```python
import torch

def _softmax(x, axis=-1):
    return torch.softmax(x, dim=axis)

def _gelu(x):
    return torch.nn.functional.gelu(x, approximate='tanh')

def _silu(x):
    return torch.nn.functional.silu(x)

def _sigmoid(x):
    return torch.sigmoid(x)

def _layernorm(x, axis=-1, eps=1e-05):
    m = x.mean(dim=axis, keepdim=True)
    v = x.var(dim=axis, keepdim=True, unbiased=False)
    return (x - m) / torch.sqrt(v + eps)

def _scatter_add(tgt, idx, src, axis=0):
    return tgt.clone().index_add_(axis, idx, src)

def _segment_sum(src, seg, n):
    out = torch.zeros((n,) + src.shape[1:], dtype=src.dtype)
    return out.index_add_(0, seg, src)

def _pad(x, pw):
    flat = tuple((v for pair in reversed(pw) for v in pair))
    return torch.nn.functional.pad(x, flat)
kernel_name = 'standalone__tree_speculative_verify_tree_attention_over_candidate_token_tree__sampling'

def setup_inputs():

    _w = lambda a: (lambda t: t.to(torch.bfloat16) if t.is_floating_point() else t)(torch.as_tensor(a))
    B, Hq, Hkv, T, C, D = (8, 32, 16, 1, 8192, 128)
    tree_mask = torch.zeros((B, T, T), dtype=float)
    for b in range(B):
        parent = torch.zeros(T, dtype=torch.int64)
        for i in range(1, T):
            parent[i] = int(torch.randint(0, i, (1,)).item())
        for i in range(T):
            j = i
            tree_mask[b, i, j] = 1.0
            while j > 0:
                j = parent[j]
                tree_mask[b, i, j] = 1.0
    return {'q': _w((lambda *s: torch.randn(*s, dtype=torch.bfloat16) * 0.8)(B, Hq, T, D)), 'k_cache': _w((lambda *s: torch.randn(*s, dtype=torch.bfloat16) * 0.8)(B, Hkv, C, D)), 'v_cache': _w((lambda *s: torch.randn(*s, dtype=torch.bfloat16) * 0.05)(B, Hkv, C, D)), 'k_tree': _w((lambda *s: torch.randn(*s, dtype=torch.bfloat16) * 0.8)(B, Hkv, T, D)), 'v_tree': _w((lambda *s: torch.randn(*s, dtype=torch.bfloat16) * 0.05)(B, Hkv, T, D)), 'tree_mask': _w(tree_mask)}

def reference(q, k_cache, v_cache, k_tree, v_tree, tree_mask):
    B, Hq, T, D = q.shape
    Hkv, C = (k_cache.shape[1], k_cache.shape[2])
    rep = Hq // Hkv
    kc = (lambda x, n, axis: torch.repeat_interleave(x, n, dim=axis))(k_cache, rep, axis=1)
    vc = (lambda x, n, axis: torch.repeat_interleave(x, n, dim=axis))(v_cache, rep, axis=1)
    kt = (lambda x, n, axis: torch.repeat_interleave(x, n, dim=axis))(k_tree, rep, axis=1)
    vt = (lambda x, n, axis: torch.repeat_interleave(x, n, dim=axis))(v_tree, rep, axis=1)
    k = torch.concatenate([kc, kt], axis=2)
    v = torch.concatenate([vc, vt], axis=2)
    scale = D ** (-0.5)
    scores = torch.einsum('bhqd,bhkd->bhqk', q, k) * scale
    ctx_mask = torch.ones((B, 1, T, C), dtype=scores.dtype)
    tm = tree_mask[:, None, :, :].clone()
    full_mask = torch.concatenate([ctx_mask, tm], axis=-1)
    scores = scores + (1.0 - full_mask) * -1000000000.0
    p = _softmax(scores, axis=-1)
    return torch.einsum('bhqk,bhkd->bhqd', p, v)
```

```python
import struct, sys, math, argparse

NAME = "standalone__tree_speculative_verify_tree_attention_over_candidate_token_tree__sampling"
HEADER = """; Kernarg layout for this problem (72 bytes, ptrs only, base s[0:1]):
"""

def f32bits(x):
    return struct.unpack("<I", struct.pack("<f", x))[0]

def hexf(x):
    return "0x%08x" % f32bits(x)

C_SCALE = math.log2(math.e) / math.sqrt(128.0)

class Gen:
    def __init__(self, S=2, W=8, N=4, pol="", kmode=1, mapmode=0, two_kernel=False, vpol=None, kpol=None):
        self.S, self.W, self.N = S, W, N
        self.kpol = pol if kpol is None else kpol
        self.vpol = pol if vpol is None else vpol
        self.kmode = kmode
        self.mapmode = mapmode
        self.two_kernel = two_kernel
        self.lines = []
        self.NWG = 128 * S
        self.KEYS_WG = 8192 // S
        self.WGBYTES = self.KEYS_WG * 256
        self.STRIDE = W * 4096
        self.NT = self.KEYS_WG // 16 // W
        assert self.NT % N == 0 or True
        assert 8 * N - 4 <= 63

    def e(self, s):
        self.lines.append(s)

    def emit_header(self):
        S, W = self.S, self.W
        lds = W * 1024 + W * 16
        self.e(HEADER.rstrip("\n"))
        if self.two_kernel:
            self.e("; @launch kernel=%s_kernel grid=(%d,1,1) block=(%d,1,1) lds=%d" % (NAME, self.NWG, 64 * W, lds))
            self.e("; @launch kernel=combine_kernel grid=(128,1,1) block=(64,1,1) lds=0")
        else:
            self.e("; @launch grid=(%d,1,1) block=(%d,1,1) lds=%d" % (self.NWG, 64 * W, lds))
        self.e('.amdgcn_target "amdgcn-amd-amdhsa--gfx950"')
        self.e(".text")
        self.e(".globl %s_kernel" % NAME)
        self.e(".p2align 8")
        self.e(".type %s_kernel,@function" % NAME)
        self.e("%s_kernel:" % NAME)

    V_KOFF, V_VOFF = 1, 2
    V_Q = 4
    V_MASK = 20
    V_O = 24
    V_S = 28
    V_P = 32
    V_B = 36
    V_M, V_NMC, V_L, V_TM, V_T1, V_T2, V_C, V_LANE = 52, 53, 54, 55, 56, 57, 58, 59
    V_X = 60
    V_D = 64
    def ring_base(self):
        return 64 if self.kmode == 1 else 80
    def kreg(self, j):
        return self.ring_base() + 32 * j
    def vreg(self, j):
        return self.ring_base() + 32 * j + 16
    def nvgpr(self):
        return self.ring_base() + 32 * self.N

    def issue_k(self, j, soff):
        k = self.kreg(j)
        for t in range(4):
            off = t * 64 if self.kmode == 1 else t * 1024
            self.e("  buffer_load_dwordx4 v[%d:%d], v%d, s[24:27], %s offen offset:%d %s" %
                   (k + 4 * t, k + 4 * t + 3, self.V_KOFF, soff, off, self.kpol))

    def issue_v(self, j, soff):
        v = self.vreg(j)
        for r in range(4):
            self.e("  buffer_load_dwordx4 v[%d:%d], v%d, s[28:31], %s offen offset:%d %s" %
                   (v + 4 * r, v + 4 * r + 3, self.V_VOFF, soff, r * 1024, self.vpol))

    def qk(self, k):
        q = self.V_Q
        if self.kmode == 1:
            s = self.V_S
            for t in range(4):
                c = "0" if t == 0 else "v[%d:%d]" % (s, s + 3)
                self.e("  v_mfma_f32_16x16x32_bf16 v[%d:%d], v[%d:%d], v[%d:%d], %s" %
                       (s, s + 3, k + 4 * t, k + 4 * t + 3, q + 4 * t, q + 4 * t + 3, c))
        else:
            d = self.V_D
            for r in range(4):
                self.e("  v_mfma_f32_16x16x32_bf16 v[%d:%d], v[%d:%d], v[%d:%d], 0" %
                       (d + 4 * r, d + 4 * r + 3, k + 4 * r, k + 4 * r + 3, q, q + 3))

    def reduce_dpp(self, r, dst):
        d = self.V_D + 4 * r
        self.e("  v_mul_f32_dpp v%d, v%d, v%d quad_perm:[0,0,0,0] row_mask:0xf bank_mask:0xf" % (dst, d, self.V_C))
        for s in range(1, 4):
            self.e("  v_fmac_f32_dpp v%d, v%d, v%d quad_perm:[%d,%d,%d,%d] row_mask:0xf bank_mask:0xf" %
                   (dst, d + s, self.V_C, s, s, s, s))

    def xreg(self, r):
        return (self.V_S if self.kmode == 1 else self.V_X) + r

    def rescale(self, label, back):
        m, nmc, l, tm, t1 = self.V_M, self.V_NMC, self.V_L, self.V_TM, self.V_T1
        o = self.V_O
        self.e("%s:" % label)
        self.e("  v_mov_b32 v%d, v%d" % (t1, tm))
        self.e("  s_nop 1")
        self.e("  v_permlane16_swap_b32 v%d, v%d" % (tm, t1))
        self.e("  s_nop 1")
        self.e("  v_max_f32 v%d, v%d, v%d" % (tm, tm, t1))
        self.e("  v_mov_b32 v%d, v%d" % (t1, tm))
        self.e("  s_nop 1")
        self.e("  v_permlane32_swap_b32 v%d, v%d" % (tm, t1))
        self.e("  s_nop 1")
        self.e("  v_max_f32 v%d, v%d, v%d" % (tm, tm, t1))
        self.e("  v_max_f32 v%d, v%d, v%d" % (tm, tm, m))
        self.e("  v_sub_f32 v%d, v%d, v%d" % (t1, m, tm))
        if self.kmode == 1:
            self.e("  v_mul_f32 v%d, s34, v%d" % (t1, t1))
        self.e("  v_exp_f32 v%d, v%d" % (t1, t1))
        self.e("  v_mov_b32 v%d, v%d" % (m, tm))
        if self.kmode == 1:
            self.e("  v_mul_f32 v%d, s35, v%d" % (nmc, tm))
        else:
            self.e("  s_nop 0")
        self.e("  v_mul_f32 v%d, v%d, v%d" % (l, l, t1))
        for r in range(4):
            self.e("  v_mul_f32 v%d, v%d, v%d" % (o + r, o + r, t1))
        self.e("  s_branch %s" % back)

    def tile(self, j, uid, last_iter_noload=False):
        N = self.N
        k, v = self.kreg(j), self.vreg(j)
        m, nmc, l, tm = self.V_M, self.V_NMC, self.V_L, self.V_TM
        p, b, o, mk = self.V_P, self.V_B, self.V_O, self.V_MASK
        wait = 8 * N - 4
        self.e("  ; ---- tile slot %d" % j)
        self.e("  s_waitcnt vmcnt(%d)" % wait)
        self.qk(k)
        self.issue_k(j, "s32")
        if self.kmode == 1:
            self.e("  s_nop 3")
        else:
            self.e("  s_nop 0")
            for r in range(4):
                self.reduce_dpp(r, self.V_X + r)
        x = [self.xreg(r) for r in range(4)]
        self.e("  v_max3_f32 v%d, v%d, v%d, v%d" % (tm, x[0], x[1], x[2]))
        self.e("  v_max_f32 v%d, v%d, v%d" % (tm, tm, x[3]))
        self.e("  v_cmp_gt_f32 vcc, v%d, v%d" % (tm, m))
        self.e("  s_cbranch_vccnz L_resc_%s" % uid)
        self.e("L_back_%s:" % uid)
        for r in range(4):
            if self.kmode == 1:
                self.e("  v_fma_f32 v%d, v%d, s34, v%d" % (p + r, x[r], nmc))
            else:
                self.e("  v_sub_f32 v%d, v%d, v%d" % (p + r, x[r], m))
        for r in range(4):
            self.e("  v_exp_f32 v%d, v%d" % (p + r, p + r))
        self.e("  s_nop 0")
        for r in range(4):
            self.e("  v_add_f32 v%d, v%d, v%d" % (l, l, p + r))
        for r in range(4):
            self.e("  v_cvt_pk_bf16_f32 v%d, v%d, v%d" % (p + r, p + r, p + r))
        for r in range(4):
            for rr in range(4):
                self.e("  v_and_b32 v%d, v%d, v%d" % (b + 4 * r + rr, p + r, mk + rr))
        self.e("  s_waitcnt vmcnt(%d)" % wait)
        for r in range(4):
            self.e("  v_mfma_f32_16x16x32_bf16 v[%d:%d], v[%d:%d], v[%d:%d], v[%d:%d]" %
                   (o, o + 3, v + 4 * r, v + 4 * r + 3, b + 4 * r, b + 4 * r + 3, o, o + 3))
        self.issue_v(j, "s32")
        self.e("  s_add_u32 s32, s32, %d" % self.STRIDE)

    def main_kernel(self):
        S, W, N = self.S, self.W, self.N
        e = self.e
        lane = self.V_LANE
        e("  s_cmp_ge_u32 s2, %d" % self.NWG)
        e("  s_cbranch_scc1 L_end")
        e("  s_load_dwordx16 s[4:19], s[0:1], 0")
        e("  s_load_dwordx2 s[20:21], s[0:1], 64")
        e("  v_and_b32 v%d, 63, v0" % lane)
        e("  v_lshrrev_b32 v3, 6, v0")
        e("  s_nop 0")
        e("  v_readfirstlane_b32 s3, v3")
        if self.mapmode == 0:
            e("  s_and_b32 s22, s2, 127")
            e("  s_lshr_b32 s23, s2, 7")
        else:
            lg = int(math.log2(S))
            e("  s_lshr_b32 s22, s2, %d" % lg)
            e("  s_and_b32 s23, s2, %d" % (S - 1))
        e("  v_lshrrev_b32 v60, 4, v%d            ; g" % lane)
        e("  v_and_b32 v61, 15, v%d               ; i / n" % lane)
        e("  v_lshlrev_b32 v%d, 4, v%d" % (self.V_VOFF, lane))
        if self.kmode == 1:
            e("  v_and_b32 v62, 3, v61")
            e("  v_lshlrev_b32 v62, 10, v62          ; (i&3)*4*256")
            e("  v_lshrrev_b32 v63, 2, v61")
            e("  v_lshlrev_b32 v63, 8, v63           ; (i>>2)*256")
            e("  v_add_u32 v62, v62, v63")
            e("  v_lshlrev_b32 v63, 4, v60           ; g*16")
            e("  v_add_u32 v%d, v62, v63" % self.V_KOFF)
            e("  v_lshrrev_b32 v62, 3, v61")
            e("  v_lshlrev_b32 v62, 8, v62")
            e("  v_add_u32 v3, v62, v63")
        else:
            e("  v_lshrrev_b32 v62, 2, v61")
            e("  v_lshlrev_b32 v62, 8, v62           ; kk*256")
            e("  v_and_b32 v63, 3, v61               ; s")
            e("  v_lshlrev_b32 v63, 4, v63           ; s*16")
            e("  v_lshl_add_u32 v63, v60, 6, v63     ; g*64 + s*16")
            e("  v_add_u32 v%d, v62, v63" % self.V_KOFF)
            e("  v_lshrrev_b32 v62, 3, v61")
            e("  v_lshlrev_b32 v62, 8, v62")
            e("  v_add_u32 v3, v62, v63")
        e("  v_and_b32 v62, 1, v61")
        e("  v_cmp_eq_u32 vcc, 1, v62")
        e("  v_mov_b32 v62, 0xffff")
        e("  v_mov_b32 v63, 0xffff0000")
        e("  v_cndmask_b32 v62, v62, v63, vcc")
        e("  v_bfe_u32 v63, v61, 1, 2             ; (n&7)>>1")
        for rr in range(4):
            e("  v_cmp_eq_u32 vcc, %d, v63" % rr)
            e("  s_nop 1")
            e("  v_cndmask_b32 v%d, 0, v62, vcc" % (self.V_MASK + rr))
        e("  s_mov_b32 s34, %s" % hexf(C_SCALE))
        e("  s_mov_b32 s35, %s" % hexf(-C_SCALE))
        e("  v_mov_b32 v%d, s34" % self.V_C)
        e("  v_mov_b32 v%d, 0xff800000" % self.V_M)
        e("  v_mov_b32 v%d, 0" % self.V_NMC)
        e("  v_mov_b32 v%d, 0" % self.V_L)
        for r in range(4):
            e("  v_mov_b32 v%d, 0" % (self.V_O + r))
        e("  s_waitcnt lgkmcnt(0)")
        e("  s_lshl_b32 s36, s22, 9")
        e("  s_add_u32 s4, s4, s36")
        e("  s_addc_u32 s5, s5, 0")
        nq = 4 if self.kmode == 1 else 1
        for t in range(nq):
            e("  global_load_dwordx4 v[%d:%d], v3, s[4:5] offset:%d" % (self.V_Q + 4 * t, self.V_Q + 4 * t + 3, t * 64))
        e("  s_lshl_b32 s36, s22, 21")
        e("  s_mul_i32 s37, s23, %d" % self.WGBYTES)
        e("  s_add_u32 s36, s36, s37")
        e("  s_lshl_b32 s37, s3, 12              ; wave*4096")
        e("  s_add_u32 s36, s36, s37")
        e("  s_add_u32 s24, s6, s36")
        e("  s_addc_u32 s25, s7, 0")
        e("  s_and_b32 s25, s25, 0xffff")
        e("  s_sub_u32 s26, %d, s37" % self.WGBYTES)
        e("  s_mov_b32 s27, 0x20000")
        e("  s_add_u32 s28, s8, s36")
        e("  s_addc_u32 s29, s9, 0")
        e("  s_and_b32 s29, s29, 0xffff")
        e("  s_mov_b32 s30, s26")
        e("  s_mov_b32 s31, 0x20000")
        e("  s_or_b32 s38, s23, s3")
        e("  s_cmp_lg_u32 s38, 0")
        e("  s_cbranch_scc1 L_notree_issue")
        e("  s_lshl_b32 s36, s22, 8              ; pair*256")
        e("  s_add_u32 s10, s10, s36")
        e("  s_addc_u32 s11, s11, 0")
        e("  s_add_u32 s12, s12, s36")
        e("  s_addc_u32 s13, s13, 0")
        if self.kmode == 1:
            e("  v_lshlrev_b32 v62, 4, v60           ; g*16")
            for t in range(4):
                e("  global_load_dwordx4 v[%d:%d], v62, s[10:11] offset:%d" % (self.V_B + 4 * t, self.V_B + 4 * t + 3, t * 64))
        else:
            e("  v_and_b32 v63, 3, v61")
            e("  v_lshlrev_b32 v63, 4, v63")
            e("  v_lshl_add_u32 v62, v60, 6, v63     ; g*64 + s*16")
            e("  global_load_dwordx4 v[%d:%d], v62, s[10:11]" % (self.V_B, self.V_B + 3))
        e("  v_and_b32 v63, 7, v61")
        e("  v_lshlrev_b32 v63, 1, v63")
        e("  v_lshl_add_u32 v63, v60, 6, v63")
        for r in range(4):
            e("  global_load_ushort v%d, v63, s[12:13] offset:%d" % (self.V_P + r, r * 16))
        e("  s_lshr_b32 s36, s22, 4")
        e("  s_lshl_b32 s37, s36, 1")
        e("  s_and_b32 s37, s37, 0xfffffffc")
        e("  s_load_dword s39, s[14:15], s37")
        e("L_notree_issue:")
        e("  s_mov_b32 s32, 0")
        for j in range(N):
            self.issue_k(j, "s32")
            self.issue_v(j, "s32")
            e("  s_add_u32 s32, s32, %d" % self.STRIDE)
        e("  s_cmp_lg_u32 s38, 0")
        e("  s_cbranch_scc1 L_notree")
        e("  s_waitcnt lgkmcnt(0)")
        e("  s_and_b32 s36, s36, 1")
        e("  s_lshl_b32 s36, s36, 4")
        e("  s_lshr_b32 s39, s39, s36")
        e("  s_lshl_b32 s39, s39, 16")
        e("  s_waitcnt vmcnt(%d)" % (8 * N))
        if self.kmode == 1:
            self.qk(self.V_B)
            e("  s_nop 7")
            e("  v_sub_f32 v62, 1.0, s39")
            e("  v_mul_f32 v62, %s, v62" % hexf(-1e9 * math.sqrt(128.0)))
            e("  v_add_f32 v%d, v%d, v62" % (self.V_M, self.V_S))
            e("  v_mul_f32 v%d, s35, v%d" % (self.V_NMC, self.V_M))
        else:
            d, q = self.V_D, self.V_Q
            e("  v_mfma_f32_16x16x32_bf16 v[%d:%d], v[%d:%d], v[%d:%d], 0" % (d, d + 3, self.V_B, self.V_B + 3, q, q + 3))
            e("  s_nop 7")
            self.reduce_dpp(0, self.V_X)
            e("  v_sub_f32 v62, 1.0, s39")
            e("  v_mul_f32 v62, %s, v62" % hexf(-1e9 * math.log2(math.e)))
            e("  v_add_f32 v%d, v%d, v62" % (self.V_M, self.V_X))
        for r in range(4):
            e("  v_lshlrev_b32 v%d, 16, v%d" % (self.V_O + r, self.V_P + r))
        e("  v_cmp_gt_u32 vcc, 16, v%d" % lane)
        e("  s_nop 1")
        e("  v_cndmask_b32 v%d, 0, 1.0, vcc" % self.V_L)
        e("L_notree:")
        iters = self.NT // N
        rem = self.NT % N
        e("  s_mov_b32 s33, %d" % iters)
        e("L_loop:")
        for j in range(N):
            self.tile(j, "m%d" % j)
        e("  s_sub_u32 s33, s33, 1")
        e("  s_cmp_lg_u32 s33, 0")
        e("  s_cbranch_scc1 L_loop")
        for j in range(rem):
            self.tile(j, "r%d" % j)
        l, t1, m = self.V_L, self.V_T1, self.V_M
        e("  v_mov_b32 v%d, v%d" % (t1, l))
        e("  s_nop 1")
        e("  v_permlane16_swap_b32 v%d, v%d" % (l, t1))
        e("  s_nop 1")
        e("  v_add_f32 v%d, v%d, v%d" % (l, l, t1))
        e("  v_mov_b32 v%d, v%d" % (t1, l))
        e("  s_nop 1")
        e("  v_permlane32_swap_b32 v%d, v%d" % (l, t1))
        e("  s_nop 1")
        e("  v_add_f32 v%d, v%d, v%d" % (l, l, t1))
        e("  v_lshrrev_b32 v60, 4, v%d" % lane)
        e("  v_and_b32 v61, 15, v%d" % lane)
        e("  v_lshrrev_b32 v62, 3, v61")
        e("  v_lshlrev_b32 v62, 9, v62")
        e("  v_lshl_add_u32 v62, v60, 7, v62")
        e("  v_and_b32 v63, 7, v61")
        e("  v_lshl_add_u32 v62, v63, 2, v62")
        e("  s_lshl_b32 s36, s3, 10")
        e("  v_add_u32 v62, s36, v62")
        for r in range(4):
            e("  ds_write_b32 v62, v%d offset:%d" % (self.V_O + r, r * 32))
        e("  v_lshrrev_b32 v63, 3, v61")
        e("  v_lshlrev_b32 v63, 3, v63")
        e("  s_lshl_b32 s36, s3, 4")
        e("  v_add_u32 v63, s36, v63")
        e("  v_mov_b32 v60, v%d" % m)
        e("  v_mov_b32 v61, v%d" % l)
        e("  ds_write_b64 v63, v[60:61] offset:%d" % (W * 1024))
        e("  s_waitcnt vmcnt(0) lgkmcnt(0)")
        e("  s_barrier")
        e("  s_cmp_lg_u32 s3, 0")
        e("  s_cbranch_scc1 L_end")
        e("  v_lshlrev_b32 v1, 4, v%d             ; lane*16" % lane)
        e("  v_lshrrev_b32 v2, 5, v%d" % lane)
        e("  v_lshlrev_b32 v2, 3, v2              ; h*8")
        OB, MB = 64, 64 + 4 * W
        for w in range(W):
            e("  ds_read_b64 v[%d:%d], v2 offset:%d" % (MB + 2 * w, MB + 2 * w + 1, W * 1024 + w * 16))
        for w in range(W):
            e("  ds_read_b128 v[%d:%d], v1 offset:%d" % (OB + 4 * w, OB + 4 * w + 3, w * 1024))
        e("  s_waitcnt lgkmcnt(0)")
        self.merge(W, OB, MB, 4, 8)
        e("  s_mul_i32 s36, s22, %d" % S)
        e("  s_add_u32 s36, s36, s23")
        e("  s_lshl_b32 s36, s36, 11")
        e("  s_add_u32 s40, s20, s36")
        e("  s_addc_u32 s41, s21, 0")
        e("  v_mov_b32 v10, 0")
        e("  v_mov_b32 v11, 0")
        pol = "" if self.two_kernel else "sc1"
        e("  global_store_dwordx4 v1, v[4:7], s[40:41] %s" % pol)
        e("  global_store_dwordx4 v1, v[8:11], s[40:41] offset:1024 %s" % pol)
        if self.two_kernel:
            e("  s_branch L_end")
        else:
            e("  s_waitcnt vmcnt(0)")
            e("  s_lshr_b32 s36, s22, 1")
            e("  s_lshl_b32 s36, s36, 2")
            e("  s_and_b32 s37, s22, 1")
            e("  s_lshl_b32 s37, s37, 4")
            e("  s_lshl_b32 s42, 1, s37")
            e("  v_mov_b32 v12, s36")
            e("  v_mov_b32 v13, s42")
            e("  s_mov_b64 exec, 1")
            e("  global_atomic_add v14, v12, v13, s[18:19] sc0")
            e("  s_waitcnt vmcnt(0)")
            e("  v_readfirstlane_b32 s43, v14")
            e("  s_mov_b64 exec, -1")
            e("  s_lshr_b32 s43, s43, s37")
            e("  s_and_b32 s43, s43, 0xffff")
            e("  s_cmp_lg_u32 s43, %d" % (S - 1))
            e("  s_cbranch_scc1 L_end")
            self.final_combine("sc1")
        e("L_end:")
        e("  s_endpgm")
        for j in range(N):
            self.rescale("L_resc_m%d" % j, "L_back_m%d" % j)
        for j in range(rem):
            self.rescale("L_resc_r%d" % j, "L_back_r%d" % j)

    def merge(self, n, OB, MB, OD, MD):
        e = self.e
        e("  v_mov_b32 v%d, v%d" % (MD, MB))
        for w in range(1, n):
            e("  v_max_f32 v%d, v%d, v%d" % (MD, MD, MB + 2 * w))
        for w in range(n):
            e("  v_sub_f32 v%d, v%d, v%d" % (MB + 2 * w, MB + 2 * w, MD))
        if self.kmode == 1:
            for w in range(n):
                e("  v_mul_f32 v%d, s34, v%d" % (MB + 2 * w, MB + 2 * w))
        for w in range(n):
            e("  v_exp_f32 v%d, v%d" % (MB + 2 * w, MB + 2 * w))
        e("  s_nop 0")
        e("  v_mul_f32 v%d, v%d, v%d" % (MD + 1, MB, MB + 1))
        for w in range(1, n):
            e("  v_fmac_f32 v%d, v%d, v%d" % (MD + 1, MB + 2 * w, MB + 2 * w + 1))
        for r in range(4):
            e("  v_mul_f32 v%d, v%d, v%d" % (OD + r, MB, OB + r))
        for w in range(1, n):
            for r in range(4):
                e("  v_fmac_f32 v%d, v%d, v%d" % (OD + r, MB + 2 * w, OB + 4 * w + r))

    def final_combine(self, pol):
        e = self.e
        S = self.S
        e("  s_mul_i32 s36, s22, %d" % (S * 2048))
        e("  s_add_u32 s40, s20, s36")
        e("  s_addc_u32 s41, s21, 0")
        OB = 64
        MB = 64 + 4 * S
        MT = MB + 2 * S
        MT += MT & 1
        for s in range(S):
            off = s * 2048
            if off + 1024 + 16 <= 4095:
                e("  global_load_dwordx4 v[%d:%d], v1, s[40:41] offset:%d %s" % (OB + 4 * s, OB + 4 * s + 3, off, pol))
                e("  global_load_dwordx2 v[%d:%d], v1, s[40:41] offset:%d %s" % (MB + 2 * s, MB + 2 * s + 1, off + 1024, pol))
            else:
                e("  v_add_u32 v3, %d, v1" % off)
                e("  global_load_dwordx4 v[%d:%d], v3, s[40:41] %s" % (OB + 4 * s, OB + 4 * s + 3, pol))
                e("  global_load_dwordx2 v[%d:%d], v3, s[40:41] offset:1024 %s" % (MB + 2 * s, MB + 2 * s + 1, pol))
        e("  s_waitcnt vmcnt(0)")
        self.merge(S, OB, MB, 4, 8)
        e("  v_rcp_f32 v9, v9")
        e("  s_nop 0")
        for r in range(4):
            e("  v_mul_f32 v%d, v%d, v9" % (4 + r, 4 + r))
        e("  v_cvt_pk_bf16_f32 v4, v4, v5")
        e("  v_cvt_pk_bf16_f32 v5, v6, v7")
        e("  s_lshl_b32 s36, s22, 9")
        e("  s_add_u32 s16, s16, s36")
        e("  s_addc_u32 s17, s17, 0")
        e("  v_lshrrev_b32 v2, 1, v1             ; lane*8")
        e("  global_store_dwordx2 v2, v[4:5], s[16:17]")

    def combine_kernel(self):
        e = self.e
        e(".globl combine_kernel")
        e(".p2align 8")
        e(".type combine_kernel,@function")
        e("combine_kernel:")
        e("  s_cmp_ge_u32 s2, 128")
        e("  s_cbranch_scc1 L_end2")
        e("  s_load_dwordx2 s[16:17], s[0:1], 48")
        e("  s_load_dwordx2 s[20:21], s[0:1], 64")
        e("  s_mov_b32 s22, s2")
        e("  s_mov_b32 s34, %s" % hexf(C_SCALE))
        e("  v_lshlrev_b32 v1, 4, v0")
        e("  s_waitcnt lgkmcnt(0)")
        self.final_combine("")
        e("L_end2:")
        e("  s_endpgm")

    def descriptor(self, name, nv, ns=64):
        e = self.e
        nv = max(nv, 96)
        acc = (nv + 3) // 4 * 4
        e(".p2align 6")
        e(".amdhsa_kernel %s" % name)
        e("  .amdhsa_next_free_vgpr %d" % nv)
        e("  .amdhsa_next_free_sgpr %d" % ns)
        e("  .amdhsa_accum_offset %d" % acc)
        e("  .amdhsa_group_segment_fixed_size 0")
        e("  .amdhsa_kernarg_size 72")
        e("  .amdhsa_user_sgpr_count 2")
        e("  .amdhsa_user_sgpr_kernarg_segment_ptr 1")
        e("  .amdhsa_system_sgpr_workgroup_id_x 1")
        e(".end_amdhsa_kernel")

    def build(self):
        self.emit_header()
        self.main_kernel()
        if self.two_kernel:
            self.combine_kernel()
        self.e('.section .rodata,"a"')
        self.descriptor(NAME + "_kernel", self.nvgpr())
        if self.two_kernel:
            self.descriptor("combine_kernel", 64 + 6 * self.S + 8)
        return "\n".join(self.lines) + "\n"

if __name__ == "__main__":
    ap = argparse.ArgumentParser()
    ap.add_argument("-o", default="cdna_kernels/%s.s" % NAME)
    ap.add_argument("--S", type=int, default=2)
    ap.add_argument("--W", type=int, default=8)
    ap.add_argument("--N", type=int, default=4)
    ap.add_argument("--pol", default="")
    ap.add_argument("--kmode", type=int, default=1)
    ap.add_argument("--map", type=int, default=0)
    ap.add_argument("--two", action="store_true")
    a = ap.parse_args()
    g = Gen(S=a.S, W=a.W, N=a.N, pol=a.pol, kmode=a.kmode, mapmode=a.map, two_kernel=a.two)
    open(a.o, "w").write(g.build())
    print("wrote", a.o, "vgprs", g.nvgpr())
```

```python
import struct, sys, math, argparse

NAME = "standalone__tree_speculative_verify_tree_attention_over_candidate_token_tree__sampling"
HEADER = """; Kernarg layout for this problem (72 bytes, ptrs only, base s[0:1]):
"""

def f32bits(x):
    return struct.unpack("<I", struct.pack("<f", x))[0]

def hexf(x):
    return "0x%08x" % f32bits(x)

C_SCALE = math.log2(math.e) / math.sqrt(128.0)

class Gen:
    def __init__(self, S=2, W=8, N=4, pol="", kmode=1, mapmode=0, two_kernel=False, vpol=None, kpol=None, stamp=False, rot=0, ldsmin=0, contig=False, amap=None):
        self.amap = amap
        self.ldsmin = ldsmin
        self.contig = contig
        self.stamp = stamp
        self.rot = rot
        self.S, self.W, self.N = S, W, N
        self.kpol = pol if kpol is None else kpol
        self.vpol = pol if vpol is None else vpol
        self.kmode = kmode
        self.mapmode = mapmode
        self.two_kernel = two_kernel
        self.lines = []
        self.NWG = 128 * S
        self.KEYS_WG = 8192 // S
        self.WGBYTES = self.KEYS_WG * 256
        self.STRIDE = 4096 if contig else W * 4096
        self.NT = self.KEYS_WG // 16 // W
        if amap:
            self.V_VR = max(64 + 32 * N, 64 + 6 * W + 2, 64 + 6 * S + 4)
        assert self.NT % N == 0 or True
        assert 8 * N - 4 <= 63

    def e(self, s):
        self.lines.append(s)

    def emit_header(self):
        S, W = self.S, self.W
        lds = max(W * 1024 + W * 16, self.ldsmin)
        self.e(HEADER.rstrip("\n"))
        if self.two_kernel:
            self.e("; @launch kernel=%s_kernel grid=(%d,1,1) block=(%d,1,1) lds=%d" % (NAME, self.NWG, 64 * W, lds))
            self.e("; @launch kernel=combine_kernel grid=(128,1,1) block=(64,1,1) lds=0")
        else:
            self.e("; @launch grid=(%d,1,1) block=(%d,1,1) lds=%d" % (self.NWG, 64 * W, lds))
        self.e('.amdgcn_target "amdgcn-amd-amdhsa--gfx950"')
        self.e(".text")
        self.e(".globl %s_kernel" % NAME)
        self.e(".p2align 8")
        self.e(".type %s_kernel,@function" % NAME)
        self.e("%s_kernel:" % NAME)

    V_KOFF, V_VOFF = 1, 2
    V_Q = 4
    V_MASK = 20
    V_O = 24
    V_S = 28
    V_P = 32
    V_B = 36
    V_M, V_NMC, V_L, V_TM, V_T1, V_T2, V_C, V_LANE = 52, 53, 54, 55, 56, 57, 58, 59
    V_X = 60
    V_D = 64
    V_VR = 0
    def ring_base(self):
        return 64 if self.kmode == 1 else 80
    def kreg(self, j):
        return self.ring_base() + 32 * j
    def vreg(self, j):
        return self.ring_base() + 32 * j + 16
    def nvgpr(self):
        if self.amap:
            return self.V_VR + 4
        return max(self.ring_base() + 32 * self.N, 64 + 6 * self.W + 2, 64 + 6 * self.S + 4)

    def issue_k(self, j, soff):
        k = self.kreg(j)
        for t in range(4):
            off = t * 64 if self.kmode == 1 else t * 1024
            self.e("  buffer_load_dwordx4 v[%d:%d], v%d, s[24:27], %s offen offset:%d %s" %
                   (k + 4 * t, k + 4 * t + 3, self.V_KOFF, soff, off, self.kpol))

    def issue_v(self, j, soff):
        v = self.vreg(j)
        for r in range(4):
            if self.amap:
                gs = self.amap["gs"]
                if gs * 3 <= 3072:
                    self.e("  buffer_load_dwordx4 v[%d:%d], v%d, s[28:31], %s offen offset:%d %s" %
                       (v + 4 * r, v + 4 * r + 3, self.V_VOFF, soff, r * gs, self.vpol))
                else:
                    self.e("  buffer_load_dwordx4 v[%d:%d], v%d, s[28:31], %s offen %s" %
                       (v + 4 * r, v + 4 * r + 3, self.V_VR + r, soff, self.vpol))
            else:
                self.e("  buffer_load_dwordx4 v[%d:%d], v%d, s[28:31], %s offen offset:%d %s" %
                   (v + 4 * r, v + 4 * r + 3, self.V_VOFF, soff, r * 1024, self.vpol))

    def qk(self, k):
        q = self.V_Q
        if self.kmode == 1:
            s = self.V_S
            for t in range(4):
                c = "0" if t == 0 else "v[%d:%d]" % (s, s + 3)
                self.e("  v_mfma_f32_16x16x32_bf16 v[%d:%d], v[%d:%d], v[%d:%d], %s" %
                       (s, s + 3, k + 4 * t, k + 4 * t + 3, q + 4 * t, q + 4 * t + 3, c))
        else:
            d = self.V_D
            for r in range(4):
                self.e("  v_mfma_f32_16x16x32_bf16 v[%d:%d], v[%d:%d], v[%d:%d], 0" %
                       (d + 4 * r, d + 4 * r + 3, k + 4 * r, k + 4 * r + 3, q, q + 3))

    def reduce_dpp(self, r, dst):
        d = self.V_D + 4 * r
        self.e("  v_mul_f32_dpp v%d, v%d, v%d quad_perm:[0,0,0,0] row_mask:0xf bank_mask:0xf" % (dst, d, self.V_C))
        for s in range(1, 4):
            self.e("  v_fmac_f32_dpp v%d, v%d, v%d quad_perm:[%d,%d,%d,%d] row_mask:0xf bank_mask:0xf" %
                   (dst, d + s, self.V_C, s, s, s, s))

    def xreg(self, r):
        return (self.V_S if self.kmode == 1 else self.V_X) + r

    def rescale(self, label, back):
        m, nmc, l, tm, t1 = self.V_M, self.V_NMC, self.V_L, self.V_TM, self.V_T1
        o = self.V_O
        self.e("%s:" % label)
        self.e("  v_mov_b32 v%d, v%d" % (t1, tm))
        self.e("  s_nop 1")
        self.e("  v_permlane16_swap_b32 v%d, v%d" % (tm, t1))
        self.e("  s_nop 1")
        self.e("  v_max_f32 v%d, v%d, v%d" % (tm, tm, t1))
        self.e("  v_mov_b32 v%d, v%d" % (t1, tm))
        self.e("  s_nop 1")
        self.e("  v_permlane32_swap_b32 v%d, v%d" % (tm, t1))
        self.e("  s_nop 1")
        self.e("  v_max_f32 v%d, v%d, v%d" % (tm, tm, t1))
        self.e("  v_max_f32 v%d, v%d, v%d" % (tm, tm, m))
        self.e("  v_sub_f32 v%d, v%d, v%d" % (t1, m, tm))
        if self.kmode == 1:
            self.e("  v_mul_f32 v%d, s34, v%d" % (t1, t1))
        self.e("  v_exp_f32 v%d, v%d" % (t1, t1))
        self.e("  v_mov_b32 v%d, v%d" % (m, tm))
        if self.kmode == 1:
            self.e("  v_mul_f32 v%d, s35, v%d" % (nmc, tm))
        else:
            self.e("  s_nop 0")
        self.e("  v_mul_f32 v%d, v%d, v%d" % (l, l, t1))
        for r in range(4):
            self.e("  v_mul_f32 v%d, v%d, v%d" % (o + r, o + r, t1))
        self.e("  s_branch %s" % back)

    def tile(self, j, uid, last_iter_noload=False):
        N = self.N
        k, v = self.kreg(j), self.vreg(j)
        m, nmc, l, tm = self.V_M, self.V_NMC, self.V_L, self.V_TM
        p, b, o, mk = self.V_P, self.V_B, self.V_O, self.V_MASK
        wait = 8 * N - 4
        self.e("  ; ---- tile slot %d" % j)
        self.e("  s_waitcnt vmcnt(%d)" % wait)
        self.qk(k)
        self.calc_off()
        self.issue_k(j, self.soff())
        if self.kmode == 1:
            self.e("  s_nop 3")
        else:
            self.e("  s_nop 0")
            for r in range(4):
                self.reduce_dpp(r, self.V_X + r)
        x = [self.xreg(r) for r in range(4)]
        self.e("  v_max3_f32 v%d, v%d, v%d, v%d" % (tm, x[0], x[1], x[2]))
        self.e("  v_max_f32 v%d, v%d, v%d" % (tm, tm, x[3]))
        self.e("  v_cmp_gt_f32 vcc, v%d, v%d" % (tm, m))
        self.e("  s_cbranch_vccnz L_resc_%s" % uid)
        self.e("L_back_%s:" % uid)
        for r in range(4):
            if self.kmode == 1:
                self.e("  v_fma_f32 v%d, v%d, s34, v%d" % (p + r, x[r], nmc))
            else:
                self.e("  v_sub_f32 v%d, v%d, v%d" % (p + r, x[r], m))
        for r in range(4):
            self.e("  v_exp_f32 v%d, v%d" % (p + r, p + r))
        self.e("  s_nop 0")
        for r in range(4):
            self.e("  v_add_f32 v%d, v%d, v%d" % (l, l, p + r))
        for r in range(4):
            self.e("  v_cvt_pk_bf16_f32 v%d, v%d, v%d" % (p + r, p + r, p + r))
        for r in range(4):
            for rr in range(4):
                self.e("  v_and_b32 v%d, v%d, v%d" % (b + 4 * r + rr, p + r, mk + rr))
        self.e("  s_waitcnt vmcnt(%d)" % wait)
        for r in range(4):
            self.e("  v_mfma_f32_16x16x32_bf16 v[%d:%d], v[%d:%d], v[%d:%d], v[%d:%d]" %
                   (o, o + 3, v + 4 * r, v + 4 * r + 3, b + 4 * r, b + 4 * r + 3, o, o + 3))
        self.issue_v(j, self.soff())
        self.e("  s_add_u32 s32, s32, %d" % self.STRIDE)

    def soff(self):
        return "s68" if (self.rot or self.amap) else "s32"

    def calc_off(self):
        if self.amap:
            first = True
            for (lo, n, pos) in self.amap["fields"]:
                dst = "s68" if first else "s71"
                self.e("  s_bfe_u32 %s, s70, 0x%x" % (dst, (n << 16) | lo))
                if pos:
                    self.e("  s_lshl_b32 %s, %s, %d" % (dst, dst, pos))
                if not first:
                    self.e("  s_or_b32 s68, s68, s71")
                first = False
            self.e("  s_cmp_lt_u32 s70, %d" % self.NT)
            self.e("  s_cselect_b32 s68, s68, 0x7ff00000")
            self.e("  s_add_u32 s70, s70, 1")
            return
        if not self.rot:
            return
        self.e("  s_add_u32 s68, s32, s69")
        self.e("  s_and_b32 s68, s68, %d" % (self.WGBYTES - 1))
        self.e("  s_cmp_lt_u32 s32, %d" % self.WGBYTES)
        self.e("  s_cselect_b32 s68, s68, 0x7ff00000")

    def main_kernel(self):
        S, W, N = self.S, self.W, self.N
        e = self.e
        lane = self.V_LANE
        e("  s_cmp_ge_u32 s2, %d" % self.NWG)
        e("  s_cbranch_scc1 L_end")
        if self.stamp:
            e("  s_memrealtime s[44:45]")
        e("  s_load_dwordx16 s[4:19], s[0:1], 0")
        e("  s_load_dwordx2 s[20:21], s[0:1], 64")
        e("  v_and_b32 v%d, 63, v0" % lane)
        e("  v_lshrrev_b32 v3, 6, v0")
        e("  s_nop 0")
        e("  v_readfirstlane_b32 s3, v3")
        if self.mapmode == 0:
            e("  s_and_b32 s22, s2, 127")
            e("  s_lshr_b32 s23, s2, 7")
        elif self.mapmode == 1:
            lg = int(math.log2(S))
            e("  s_lshr_b32 s22, s2, %d" % lg)
            e("  s_and_b32 s23, s2, %d" % (S - 1))
        else:
            lg = int(math.log2(S))
            e("  s_and_b32 s22, s2, 7")
            e("  s_lshl_b32 s22, s22, 4")
            e("  s_lshr_b32 s23, s2, %d" % (3 + lg))
            e("  s_add_u32 s22, s22, s23")
            e("  s_lshr_b32 s23, s2, 3")
            e("  s_and_b32 s23, s23, %d" % (S - 1))
        e("  v_lshrrev_b32 v60, 4, v%d            ; g" % lane)
        e("  v_and_b32 v61, 15, v%d               ; i / n" % lane)
        e("  v_lshlrev_b32 v%d, 4, v%d" % (self.V_VOFF, lane))
        if self.kmode == 1:
            e("  v_and_b32 v62, 3, v61")
            if self.amap:
                e("  v_mul_u32_u24 v62, %d, v62          ; (i&3)*gs" % self.amap["gs"])
            else:
                e("  v_lshlrev_b32 v62, 10, v62          ; (i&3)*4*256")
            e("  v_lshrrev_b32 v63, 2, v61")
            e("  v_lshlrev_b32 v63, 8, v63           ; (i>>2)*256")
            e("  v_add_u32 v62, v62, v63")
            e("  v_lshlrev_b32 v63, 4, v60           ; g*16")
            e("  v_add_u32 v%d, v62, v63" % self.V_KOFF)
            e("  v_lshrrev_b32 v62, 3, v61")
            e("  v_lshlrev_b32 v62, 8, v62")
            e("  v_add_u32 v3, v62, v63")
        else:
            e("  v_lshrrev_b32 v62, 2, v61")
            e("  v_lshlrev_b32 v62, 8, v62           ; kk*256")
            e("  v_and_b32 v63, 3, v61               ; s")
            e("  v_lshlrev_b32 v63, 4, v63           ; s*16")
            e("  v_lshl_add_u32 v63, v60, 6, v63     ; g*64 + s*16")
            e("  v_add_u32 v%d, v62, v63" % self.V_KOFF)
            e("  v_lshrrev_b32 v62, 3, v61")
            e("  v_lshlrev_b32 v62, 8, v62")
            e("  v_add_u32 v3, v62, v63")
        e("  v_and_b32 v62, 1, v61")
        e("  v_cmp_eq_u32 vcc, 1, v62")
        e("  v_mov_b32 v62, 0xffff")
        e("  v_mov_b32 v63, 0xffff0000")
        e("  v_cndmask_b32 v62, v62, v63, vcc")
        e("  v_bfe_u32 v63, v61, 1, 2             ; (n&7)>>1")
        for rr in range(4):
            e("  v_cmp_eq_u32 vcc, %d, v63" % rr)
            e("  s_nop 1")
            e("  v_cndmask_b32 v%d, 0, v62, vcc" % (self.V_MASK + rr))
        e("  s_mov_b32 s34, %s" % hexf(C_SCALE))
        e("  s_mov_b32 s35, %s" % hexf(-C_SCALE))
        e("  v_mov_b32 v%d, s34" % self.V_C)
        e("  v_mov_b32 v%d, 0xff800000" % self.V_M)
        e("  v_mov_b32 v%d, 0" % self.V_NMC)
        e("  v_mov_b32 v%d, 0" % self.V_L)
        for r in range(4):
            e("  v_mov_b32 v%d, 0" % (self.V_O + r))
        e("  s_waitcnt lgkmcnt(0)")
        if self.stamp:
            e("  s_memrealtime s[58:59]")
            for r in range(60, 68):
                e("  s_mov_b32 s%d, 0" % r)
        e("  s_lshl_b32 s36, s22, 9")
        e("  s_add_u32 s4, s4, s36")
        e("  s_addc_u32 s5, s5, 0")
        nq = 4 if self.kmode == 1 else 1
        for t in range(nq):
            e("  global_load_dwordx4 v[%d:%d], v3, s[4:5] offset:%d" % (self.V_Q + 4 * t, self.V_Q + 4 * t + 3, t * 64))
        e("  s_lshl_b32 s36, s22, 21")
        e("  s_mul_i32 s37, s23, %d" % self.WGBYTES)
        e("  s_add_u32 s36, s36, s37")
        if self.amap:
            e("  s_mul_i32 s37, s3, %d" % self.amap["ws"])
        elif self.contig:
            e("  s_mul_i32 s37, s3, %d" % (self.WGBYTES // W))
        else:
            e("  s_lshl_b32 s37, s3, 12              ; wave*4096")
        e("  s_add_u32 s36, s36, s37")
        e("  s_add_u32 s24, s6, s36")
        e("  s_addc_u32 s25, s7, 0")
        e("  s_and_b32 s25, s25, 0xffff")
        if self.contig:
            e("  s_mov_b32 s26, %d" % (self.WGBYTES // W))
        else:
            e("  s_sub_u32 s26, %d, s37" % self.WGBYTES)
        e("  s_mov_b32 s27, 0x20000")
        e("  s_add_u32 s28, s8, s36")
        e("  s_addc_u32 s29, s9, 0")
        e("  s_and_b32 s29, s29, 0xffff")
        e("  s_mov_b32 s30, s26")
        e("  s_mov_b32 s31, 0x20000")
        e("  s_or_b32 s38, s23, s3")
        e("  s_cmp_lg_u32 s38, 0")
        e("  s_cbranch_scc1 L_notree_issue")
        e("  s_lshl_b32 s36, s22, 8              ; pair*256")
        e("  s_add_u32 s10, s10, s36")
        e("  s_addc_u32 s11, s11, 0")
        e("  s_add_u32 s12, s12, s36")
        e("  s_addc_u32 s13, s13, 0")
        if self.kmode == 1:
            e("  v_lshlrev_b32 v62, 4, v60           ; g*16")
            for t in range(4):
                e("  global_load_dwordx4 v[%d:%d], v62, s[10:11] offset:%d" % (self.V_B + 4 * t, self.V_B + 4 * t + 3, t * 64))
        else:
            e("  v_and_b32 v63, 3, v61")
            e("  v_lshlrev_b32 v63, 4, v63")
            e("  v_lshl_add_u32 v62, v60, 6, v63     ; g*64 + s*16")
            e("  global_load_dwordx4 v[%d:%d], v62, s[10:11]" % (self.V_B, self.V_B + 3))
        e("  v_and_b32 v63, 7, v61")
        e("  v_lshlrev_b32 v63, 1, v63")
        e("  v_lshl_add_u32 v63, v60, 6, v63")
        for r in range(4):
            e("  global_load_ushort v%d, v63, s[12:13] offset:%d" % (self.V_P + r, r * 16))
        e("  s_lshr_b32 s36, s22, 4")
        e("  s_lshl_b32 s37, s36, 1")
        e("  s_and_b32 s37, s37, 0xfffffffc")
        e("  s_load_dword s39, s[14:15], s37")
        e("L_notree_issue:")
        e("  s_mov_b32 s32, 0")
        if self.amap:
            e("  s_mov_b32 s70, 0")
            for r in range(4):
                e("  v_add_u32 v%d, %d, v%d" % (self.V_VR + r, r * self.amap["gs"], self.V_VOFF))
        if self.rot:
            nrot = self.WGBYTES // self.STRIDE
            if self.rot == 1:
                e("  s_and_b32 s69, s2, %d" % (nrot - 1))
            elif self.rot == 2:
                e("  s_lshr_b32 s69, s2, 3")
                e("  s_and_b32 s69, s69, %d" % (nrot - 1))
            elif self.rot == 3:
                e("  s_mul_i32 s69, s2, 0x9E3779B1")
                e("  s_lshr_b32 s69, s69, 16")
                e("  s_and_b32 s69, s69, %d" % (nrot - 1))
            e("  s_mul_i32 s69, s69, %d" % self.STRIDE)
        for j in range(N):
            self.calc_off()
            self.issue_k(j, self.soff())
            self.issue_v(j, self.soff())
            e("  s_add_u32 s32, s32, %d" % self.STRIDE)
        e("  s_cmp_lg_u32 s38, 0")
        e("  s_cbranch_scc1 L_notree")
        e("  s_waitcnt lgkmcnt(0)")
        e("  s_and_b32 s36, s36, 1")
        e("  s_lshl_b32 s36, s36, 4")
        e("  s_lshr_b32 s39, s39, s36")
        e("  s_lshl_b32 s39, s39, 16")
        e("  s_waitcnt vmcnt(%d)" % (8 * N))
        if self.kmode == 1:
            self.qk(self.V_B)
            e("  s_nop 7")
            e("  v_sub_f32 v62, 1.0, s39")
            e("  v_mul_f32 v62, %s, v62" % hexf(-1e9 * math.sqrt(128.0)))
            e("  v_add_f32 v%d, v%d, v62" % (self.V_M, self.V_S))
            e("  v_mul_f32 v%d, s35, v%d" % (self.V_NMC, self.V_M))
        else:
            d, q = self.V_D, self.V_Q
            e("  v_mfma_f32_16x16x32_bf16 v[%d:%d], v[%d:%d], v[%d:%d], 0" % (d, d + 3, self.V_B, self.V_B + 3, q, q + 3))
            e("  s_nop 7")
            self.reduce_dpp(0, self.V_X)
            e("  v_sub_f32 v62, 1.0, s39")
            e("  v_mul_f32 v62, %s, v62" % hexf(-1e9 * math.log2(math.e)))
            e("  v_add_f32 v%d, v%d, v62" % (self.V_M, self.V_X))
        for r in range(4):
            e("  v_lshlrev_b32 v%d, 16, v%d" % (self.V_O + r, self.V_P + r))
        e("  v_cmp_gt_u32 vcc, 16, v%d" % lane)
        e("  s_nop 1")
        e("  v_cndmask_b32 v%d, 0, 1.0, vcc" % self.V_L)
        e("L_notree:")
        iters = self.NT // N
        rem = self.NT % N
        e("  s_mov_b32 s33, %d" % iters)
        if self.stamp:
            e("  s_waitcnt vmcnt(%d)" % (8 * N - 4))
            e("  s_memrealtime s[46:47]")
            e("  s_waitcnt lgkmcnt(0)")
        e("L_loop:")
        for j in range(N):
            self.tile(j, "m%d" % j)
        e("  s_sub_u32 s33, s33, 1")
        e("  s_cmp_lg_u32 s33, 0")
        e("  s_cbranch_scc1 L_loop")
        for j in range(rem):
            self.tile(j, "r%d" % j)
        if self.stamp:
            e("  s_memrealtime s[48:49]")
            e("  s_waitcnt lgkmcnt(0)")
            self.store_stamps(False)
        l, t1, m = self.V_L, self.V_T1, self.V_M
        e("  v_mov_b32 v%d, v%d" % (t1, l))
        e("  s_nop 1")
        e("  v_permlane16_swap_b32 v%d, v%d" % (l, t1))
        e("  s_nop 1")
        e("  v_add_f32 v%d, v%d, v%d" % (l, l, t1))
        e("  v_mov_b32 v%d, v%d" % (t1, l))
        e("  s_nop 1")
        e("  v_permlane32_swap_b32 v%d, v%d" % (l, t1))
        e("  s_nop 1")
        e("  v_add_f32 v%d, v%d, v%d" % (l, l, t1))
        e("  v_lshrrev_b32 v60, 4, v%d" % lane)
        e("  v_and_b32 v61, 15, v%d" % lane)
        e("  v_lshrrev_b32 v62, 3, v61")
        e("  v_lshlrev_b32 v62, 9, v62")
        e("  v_lshl_add_u32 v62, v60, 7, v62")
        e("  v_and_b32 v63, 7, v61")
        e("  v_lshl_add_u32 v62, v63, 2, v62")
        e("  s_lshl_b32 s36, s3, 10")
        e("  v_add_u32 v62, s36, v62")
        for r in range(4):
            e("  ds_write_b32 v62, v%d offset:%d" % (self.V_O + r, r * 32))
        e("  v_lshrrev_b32 v63, 3, v61")
        e("  v_lshlrev_b32 v63, 3, v63")
        e("  s_lshl_b32 s36, s3, 4")
        e("  v_add_u32 v63, s36, v63")
        e("  v_mov_b32 v60, v%d" % m)
        e("  v_mov_b32 v61, v%d" % l)
        e("  ds_write_b64 v63, v[60:61] offset:%d" % (W * 1024))
        e("  s_waitcnt vmcnt(0) lgkmcnt(0)")
        e("  s_barrier")
        e("  s_cmp_lg_u32 s3, 0")
        e("  s_cbranch_scc1 L_end")
        if self.stamp:
            e("  s_memrealtime s[60:61]")
        e("  v_lshlrev_b32 v1, 4, v%d             ; lane*16" % lane)
        e("  v_lshrrev_b32 v2, 5, v%d" % lane)
        e("  v_lshlrev_b32 v2, 3, v2              ; h*8")
        OB, MB = 64, 64 + 4 * W
        for w in range(W):
            e("  ds_read_b64 v[%d:%d], v2 offset:%d" % (MB + 2 * w, MB + 2 * w + 1, W * 1024 + w * 16))
        for w in range(W):
            e("  ds_read_b128 v[%d:%d], v1 offset:%d" % (OB + 4 * w, OB + 4 * w + 3, w * 1024))
        e("  s_waitcnt lgkmcnt(0)")
        self.merge(W, OB, MB, 4, 8)
        e("  s_mul_i32 s36, s22, %d" % S)
        e("  s_add_u32 s36, s36, s23")
        e("  s_lshl_b32 s36, s36, 11")
        e("  s_add_u32 s40, s20, s36")
        e("  s_addc_u32 s41, s21, 0")
        e("  v_mov_b32 v10, 0")
        e("  v_mov_b32 v11, 0")
        pol = "" if self.two_kernel else "sc1"
        e("  global_store_dwordx4 v1, v[4:7], s[40:41] %s" % pol)
        e("  global_store_dwordx4 v1, v[8:11], s[40:41] offset:1024 %s" % pol)
        if self.two_kernel:
            e("  s_branch L_end")
        else:
            e("  s_waitcnt vmcnt(0)")
            if self.stamp:
                e("  s_memrealtime s[62:63]")
            e("  s_lshr_b32 s36, s22, 1")
            e("  s_lshl_b32 s36, s36, 2")
            e("  s_and_b32 s37, s22, 1")
            e("  s_lshl_b32 s37, s37, 4")
            e("  s_lshl_b32 s42, 1, s37")
            e("  v_mov_b32 v12, s36")
            e("  v_mov_b32 v13, s42")
            e("  s_mov_b64 exec, 1")
            e("  global_atomic_add v14, v12, v13, s[18:19] sc0")
            e("  s_waitcnt vmcnt(0)")
            if self.stamp:
                e("  s_memrealtime s[64:65]")
            e("  v_readfirstlane_b32 s43, v14")
            e("  s_mov_b64 exec, -1")
            e("  s_lshr_b32 s43, s43, s37")
            e("  s_and_b32 s43, s43, 0xffff")
            e("  s_cmp_lg_u32 s43, %d" % (S - 1))
            e("  s_cbranch_scc1 L_end")
            self.final_combine("sc1")
        if self.stamp:
            e("L_end:")
            e("  s_cmp_lg_u32 s3, 0")
            e("  s_cbranch_scc1 L_end3")
            e("  s_waitcnt vmcnt(0)")
            e("  s_memrealtime s[50:51]")
            e("  s_waitcnt lgkmcnt(0)")
            self.store_stamps(True)
            e("L_end3:")
            e("  s_endpgm")
        else:
            e("L_end:")
            e("  s_endpgm")
        for j in range(N):
            self.rescale("L_resc_m%d" % j, "L_back_m%d" % j)
        for j in range(rem):
            self.rescale("L_resc_r%d" % j, "L_back_r%d" % j)

    def store_stamps(self, final):
        e = self.e
        e("  s_mul_i32 s52, s2, %d" % self.W)
        e("  s_add_u32 s52, s52, s3")
        e("  s_lshl_b32 s52, s52, 6")
        e("  s_add_u32 s52, s52, 0x20000000")
        e("  s_add_u32 s54, s20, s52")
        e("  s_addc_u32 s55, s21, 0")
        if not final:
            e("  v_mov_b32 v60, s44")
            e("  v_mov_b32 v61, s46")
            e("  v_mov_b32 v62, s48")
            e("  v_mov_b32 v63, s2")
            e("  v_mov_b32 v3, 0")
            e("  global_store_dwordx4 v3, v[60:63], s[54:55]")
            e("  v_mov_b32 v60, s58")
            e("  global_store_dword v3, v60, s[54:55] offset:48")
        else:
            e("  v_mov_b32 v60, s50")
            e("  s_getreg_b32 s56, hwreg(HW_REG_XCC_ID)")
            e("  s_getreg_b32 s57, hwreg(HW_REG_HW_ID)")
            e("  v_mov_b32 v61, s56")
            e("  v_mov_b32 v62, s57")
            e("  v_mov_b32 v63, 0")
            e("  v_mov_b32 v3, 0")
            e("  global_store_dwordx4 v3, v[60:63], s[54:55] offset:16")
            e("  v_mov_b32 v64, s60")
            e("  v_mov_b32 v65, s62")
            e("  v_mov_b32 v66, s64")
            e("  v_mov_b32 v67, s66")
            e("  global_store_dwordx4 v3, v[64:67], s[54:55] offset:32")

    def merge(self, n, OB, MB, OD, MD):
        e = self.e
        e("  v_mov_b32 v%d, v%d" % (MD, MB))
        for w in range(1, n):
            e("  v_max_f32 v%d, v%d, v%d" % (MD, MD, MB + 2 * w))
        for w in range(n):
            e("  v_sub_f32 v%d, v%d, v%d" % (MB + 2 * w, MB + 2 * w, MD))
        if self.kmode == 1:
            for w in range(n):
                e("  v_mul_f32 v%d, s34, v%d" % (MB + 2 * w, MB + 2 * w))
        for w in range(n):
            e("  v_exp_f32 v%d, v%d" % (MB + 2 * w, MB + 2 * w))
        e("  s_nop 0")
        e("  v_mul_f32 v%d, v%d, v%d" % (MD + 1, MB, MB + 1))
        for w in range(1, n):
            e("  v_fmac_f32 v%d, v%d, v%d" % (MD + 1, MB + 2 * w, MB + 2 * w + 1))
        for r in range(4):
            e("  v_mul_f32 v%d, v%d, v%d" % (OD + r, MB, OB + r))
        for w in range(1, n):
            for r in range(4):
                e("  v_fmac_f32 v%d, v%d, v%d" % (OD + r, MB + 2 * w, OB + 4 * w + r))

    def final_combine(self, pol):
        e = self.e
        S = self.S
        e("  s_mul_i32 s36, s22, %d" % (S * 2048))
        e("  s_add_u32 s40, s20, s36")
        e("  s_addc_u32 s41, s21, 0")
        OB = 64
        MB = 64 + 4 * S
        MT = MB + 2 * S
        MT += MT & 1
        for s in range(S):
            off = s * 2048
            if off + 1024 + 16 <= 4095:
                e("  global_load_dwordx4 v[%d:%d], v1, s[40:41] offset:%d %s" % (OB + 4 * s, OB + 4 * s + 3, off, pol))
                e("  global_load_dwordx2 v[%d:%d], v1, s[40:41] offset:%d %s" % (MB + 2 * s, MB + 2 * s + 1, off + 1024, pol))
            else:
                e("  v_add_u32 v3, %d, v1" % off)
                e("  global_load_dwordx4 v[%d:%d], v3, s[40:41] %s" % (OB + 4 * s, OB + 4 * s + 3, pol))
                e("  global_load_dwordx2 v[%d:%d], v3, s[40:41] offset:1024 %s" % (MB + 2 * s, MB + 2 * s + 1, pol))
        e("  s_waitcnt vmcnt(0)")
        if self.stamp:
            e("  s_memrealtime s[66:67]")
        self.merge(S, OB, MB, 4, 8)
        e("  v_rcp_f32 v9, v9")
        e("  s_nop 0")
        for r in range(4):
            e("  v_mul_f32 v%d, v%d, v9" % (4 + r, 4 + r))
        e("  v_cvt_pk_bf16_f32 v4, v4, v5")
        e("  v_cvt_pk_bf16_f32 v5, v6, v7")
        e("  s_lshl_b32 s36, s22, 9")
        e("  s_add_u32 s16, s16, s36")
        e("  s_addc_u32 s17, s17, 0")
        e("  v_lshrrev_b32 v2, 1, v1             ; lane*8")
        e("  global_store_dwordx2 v2, v[4:5], s[16:17]")

    def combine_kernel(self):
        e = self.e
        e(".globl combine_kernel")
        e(".p2align 8")
        e(".type combine_kernel,@function")
        e("combine_kernel:")
        e("  s_cmp_ge_u32 s2, 128")
        e("  s_cbranch_scc1 L_end2")
        e("  s_load_dwordx2 s[16:17], s[0:1], 48")
        e("  s_load_dwordx2 s[20:21], s[0:1], 64")
        e("  s_mov_b32 s22, s2")
        e("  s_mov_b32 s34, %s" % hexf(C_SCALE))
        e("  v_lshlrev_b32 v1, 4, v0")
        e("  s_waitcnt lgkmcnt(0)")
        self.final_combine("")
        e("L_end2:")
        e("  s_endpgm")

    def descriptor(self, name, nv, ns=80):
        e = self.e
        nv = max(nv, 96)
        acc = (nv + 3) // 4 * 4
        e(".p2align 6")
        e(".amdhsa_kernel %s" % name)
        e("  .amdhsa_next_free_vgpr %d" % nv)
        e("  .amdhsa_next_free_sgpr %d" % ns)
        e("  .amdhsa_accum_offset %d" % acc)
        e("  .amdhsa_group_segment_fixed_size 0")
        e("  .amdhsa_kernarg_size 72")
        e("  .amdhsa_user_sgpr_count 2")
        e("  .amdhsa_user_sgpr_kernarg_segment_ptr 1")
        e("  .amdhsa_system_sgpr_workgroup_id_x 1")
        e(".end_amdhsa_kernel")

    def build(self):
        self.emit_header()
        self.main_kernel()
        if self.two_kernel:
            self.combine_kernel()
        self.e('.section .rodata,"a"')
        self.descriptor(NAME + "_kernel", self.nvgpr())
        if self.two_kernel:
            self.descriptor("combine_kernel", 64 + 6 * self.S + 8)
        return "\n".join(self.lines) + "\n"

def parse_amap(txt):
    if not txt:
        return None
    a, b = txt.split(";")
    gs, ws = [1 << int(x) for x in a.split(",")]
    fields = [tuple(int(y) for y in x.split(":")) for x in b.split(",")]
    return dict(gs=gs, ws=ws, fields=fields)

if __name__ == "__main__":
    ap = argparse.ArgumentParser()
    ap.add_argument("-o", default="cdna_kernels/%s.s" % NAME)
    ap.add_argument("--S", type=int, default=2)
    ap.add_argument("--W", type=int, default=8)
    ap.add_argument("--N", type=int, default=4)
    ap.add_argument("--pol", default="")
    ap.add_argument("--kmode", type=int, default=1)
    ap.add_argument("--map", type=int, default=0)
    ap.add_argument("--two", action="store_true")
    ap.add_argument("--stamp", action="store_true")
    ap.add_argument("--rot", type=int, default=0)
    ap.add_argument("--ldsmin", type=int, default=0)
    ap.add_argument("--contig", action="store_true")
    ap.add_argument("--amap", default="")
    a = ap.parse_args()
    g = Gen(S=a.S, W=a.W, N=a.N, pol=a.pol, kmode=a.kmode, mapmode=a.map, two_kernel=a.two, stamp=a.stamp, rot=a.rot, ldsmin=a.ldsmin, contig=a.contig, amap=parse_amap(a.amap))
    open(a.o, "w").write(g.build())
    print("wrote", a.o, "vgprs", g.nvgpr())
```

```python
import struct, sys, math, argparse
sys.path.insert(0, "gen")
from gen import NAME, HEADER, f32bits, hexf, C_SCALE, parse_amap

class Gen2:
    V_KOFF, V_VOFF = 1, 2
    V_Q = 4; V_MASK = 20; V_O = 24; V_SA = 28; V_P = 32; V_B = 36
    V_M, V_NMC, V_L, V_TM, V_T1, V_ST, V_LA, V_LANE = 52, 53, 54, 55, 56, 57, 58, 59
    V_VT = 64; V_SB = 68; V_VR = 72; RING = 76
    V_D = 36
    V_C = 60

    def __init__(self, S=2, W=4, R=8, pol="nt", mapmode=0, stamp=False, ldsmin=98304, amap=None, kmode=1, kpol=None):
        self.kmode = kmode
        self.kpol = pol if kpol is None else kpol
        self.S, self.W, self.R, self.pol, self.mapmode, self.stamp = S, W, R, pol, mapmode, stamp
        self.NWG = 128 * S
        self.KEYS_WG = 8192 // S
        self.WGBYTES = self.KEYS_WG * 256
        self.NT = self.KEYS_WG // 16 // W
        assert self.NT % R == 0 and R % 2 == 0
        lw = int(math.log2(W))
        if amap is None:
            amap = dict(gs=1024, ws=4096, fields=[(0, int(math.log2(self.NT)), 12 + lw)])
        self.amap = amap
        self.SC_BYTES = W * self.NT * 128
        self.EP = self.SC_BYTES
        self.lds = max(self.EP + W * 1024 + W * 16, ldsmin)
        self.lines = []

    def e(self, s): self.lines.append(s)
    def slot(self, j): return self.RING + 16 * j
    def nvgpr(self): return max(self.RING + 16 * self.R, 76 + 6 * self.W + 2, 76 + 6 * self.S + 4)

    def calc_off(self):
        first = True
        for (lo, n, pos) in self.amap["fields"]:
            dst = "s68" if first else "s71"
            self.e("  s_bfe_u32 %s, s70, 0x%x" % (dst, (n << 16) | lo))
            if pos: self.e("  s_lshl_b32 %s, %s, %d" % (dst, dst, pos))
            if not first: self.e("  s_or_b32 s68, s68, s71")
            first = False
        self.e("  s_add_u32 s70, s70, 1")

    def issue_k(self, j):
        k = self.slot(j)
        gs = self.amap["gs"]
        for t in range(4):
            if self.kmode == 1:
                self.e("  buffer_load_dwordx4 v[%d:%d], v%d, s[24:27], s68 offen offset:%d %s" %
                   (k + 4 * t, k + 4 * t + 3, self.V_KOFF, t * 64, self.kpol))
            else:
                assert gs * 3 <= 3072
                self.e("  buffer_load_dwordx4 v[%d:%d], v%d, s[24:27], s68 offen offset:%d %s" %
                   (k + 4 * t, k + 4 * t + 3, self.V_KOFF, t * gs, self.kpol))

    def issue_v(self, j):
        v = self.slot(j); gs = self.amap["gs"]
        for r in range(4):
            if gs * 3 <= 3072:
                self.e("  buffer_load_dwordx4 v[%d:%d], v%d, s[28:31], s68 offen offset:%d %s" %
                       (v + 4 * r, v + 4 * r + 3, self.V_VOFF, r * gs, self.pol))
            else:
                self.e("  buffer_load_dwordx4 v[%d:%d], v%d, s[28:31], s68 offen %s" %
                       (v + 4 * r, v + 4 * r + 3, self.V_VR + r, self.pol))

    def qk(self, k, s):
        q = self.V_Q
        for t in range(4):
            c = "0" if t == 0 else "v[%d:%d]" % (s, s + 3)
            self.e("  v_mfma_f32_16x16x32_bf16 v[%d:%d], v[%d:%d], v[%d:%d], %s" %
                   (s, s + 3, k + 4 * t, k + 4 * t + 3, q + 4 * t, q + 4 * t + 3, c))

    def ktile(self, j, nxt):
        R = self.R
        s = self.V_SA if j % 2 == 0 else self.V_SB
        tm = self.V_TM
        self.e("  s_waitcnt vmcnt(%d)" % (4 * (R - 1)))
        if self.kmode == 1:
            self.qk(self.slot(j), s)
        else:
            k = self.slot(j); q = self.V_Q; d = self.V_D
            for r in range(4):
                self.e("  v_mfma_f32_16x16x32_bf16 v[%d:%d], v[%d:%d], v[%d:%d], 0" %
                       (d + 4 * r, d + 4 * r + 3, k + 4 * r, k + 4 * r + 3, q, q + 3))
        self.calc_off()
        if nxt == 'k': self.issue_k(j)
        else: self.issue_v(j)
        self.e("  s_nop 1")
        if self.kmode == 2:
            for r in range(4):
                self.reduce_dpp(self.V_D + 4 * r, s + r)
            self.e("  s_nop 0")
        self.e("  v_max3_f32 v%d, v%d, v%d, v%d" % (tm, s, s + 1, tm))
        self.e("  v_max3_f32 v%d, v%d, v%d, v%d" % (tm, s + 2, s + 3, tm))
        self.e("  ds_write_b128 v%d, v[%d:%d] offset:%d" % (self.V_LA, s, s + 3, j * 128))

    def reduce_dpp(self, d, dst):
        self.e("  v_mul_f32_dpp v%d, v%d, v%d quad_perm:[0,0,0,0] row_mask:0xf bank_mask:0xf" % (dst, d, self.V_C))
        for s in range(1, 4):
            self.e("  v_fmac_f32_dpp v%d, v%d, v%d quad_perm:[%d,%d,%d,%d] row_mask:0xf bank_mask:0xf" %
                   (dst, d + s, self.V_C, s, s, s, s))

    def vtile(self, j, nxt, wait, last):
        s = self.V_SA if j % 2 == 0 else self.V_SB
        sn = self.V_SB if j % 2 == 0 else self.V_SA
        p, b, o, mk, l, nmc = self.V_P, self.V_B, self.V_O, self.V_MASK, self.V_L, self.V_NMC
        v = self.slot(j)
        if not last:
            self.e("  ds_read_b128 v[%d:%d], v%d offset:%d" % (sn, sn + 3, self.V_LA, (j + 1) * 128))
            self.e("  s_waitcnt lgkmcnt(1)")
        else:
            self.e("  s_waitcnt lgkmcnt(0)")
        for r in range(4):
            if self.kmode == 1:
                self.e("  v_fma_f32 v%d, v%d, s34, v%d" % (p + r, s + r, nmc))
            else:
                self.e("  v_add_f32 v%d, v%d, v%d" % (p + r, s + r, nmc))
        for r in range(4):
            self.e("  v_exp_f32 v%d, v%d" % (p + r, p + r))
        self.e("  s_nop 0")
        for r in range(4):
            self.e("  v_add_f32 v%d, v%d, v%d" % (l, l, p + r))
        for r in range(4):
            self.e("  v_cvt_pk_bf16_f32 v%d, v%d, v%d" % (p + r, p + r, p + r))
        for r in range(4):
            for rr in range(4):
                self.e("  v_and_b32 v%d, v%d, v%d" % (b + 4 * r + rr, p + r, mk + rr))
        self.e("  s_waitcnt vmcnt(%d)" % wait)
        for r in range(4):
            self.e("  v_mfma_f32_16x16x32_bf16 v[%d:%d], v[%d:%d], v[%d:%d], v[%d:%d]" %
                   (o, o + 3, v + 4 * r, v + 4 * r + 3, b + 4 * r, b + 4 * r + 3, o, o + 3))
        if nxt:
            self.calc_off()
            self.issue_v(j)

    def build(self):
        S, W, R, NT = self.S, self.W, self.R, self.NT
        e = self.e
        lane = self.V_LANE
        e(HEADER.rstrip("\n"))
        e("; @launch grid=(%d,1,1) block=(%d,1,1) lds=%d" % (self.NWG, 64 * W, self.lds))
        e('.amdgcn_target "amdgcn-amd-amdhsa--gfx950"')
        e(".text")
        e(".globl %s_kernel" % NAME)
        e(".p2align 8")
        e(".type %s_kernel,@function" % NAME)
        e("%s_kernel:" % NAME)
        e("  s_cmp_ge_u32 s2, %d" % self.NWG)
        e("  s_cbranch_scc1 L_exit")
        if self.stamp: e("  s_memrealtime s[44:45]")
        e("  s_load_dwordx16 s[4:19], s[0:1], 0")
        e("  s_load_dwordx2 s[20:21], s[0:1], 64")
        e("  v_and_b32 v%d, 63, v0" % lane)
        e("  v_lshrrev_b32 v3, 6, v0")
        e("  s_nop 0")
        e("  v_readfirstlane_b32 s3, v3")
        lg = int(math.log2(S))
        if self.mapmode == 0:
            e("  s_and_b32 s22, s2, 127"); e("  s_lshr_b32 s23, s2, 7")
        else:
            e("  s_lshr_b32 s22, s2, %d" % lg); e("  s_and_b32 s23, s2, %d" % (S - 1))
        e("  v_lshrrev_b32 v60, 4, v%d            ; g" % lane)
        e("  v_and_b32 v61, 15, v%d               ; i / n" % lane)
        e("  v_lshlrev_b32 v%d, 4, v%d" % (self.V_VOFF, lane))
        if self.kmode == 1:
            e("  v_and_b32 v62, 3, v61")
            e("  v_mul_u32_u24 v62, %d, v62          ; (i&3)*gs" % self.amap["gs"])
            e("  v_lshrrev_b32 v63, 2, v61")
            e("  v_lshlrev_b32 v63, 8, v63           ; (i>>2)*256")
            e("  v_add_u32 v62, v62, v63")
            e("  v_lshlrev_b32 v63, 4, v60           ; g*16")
        else:
            e("  v_lshrrev_b32 v62, 2, v61")
            e("  v_lshlrev_b32 v62, 8, v62           ; kk*256")
            e("  v_and_b32 v63, 3, v61               ; s")
            e("  v_lshlrev_b32 v63, 4, v63           ; s*16")
            e("  v_lshl_add_u32 v63, v60, 6, v63     ; g*64 + s*16")
        e("  v_add_u32 v%d, v62, v63" % self.V_KOFF)
        e("  v_lshrrev_b32 v62, 3, v61")
        e("  v_lshlrev_b32 v62, 8, v62")
        e("  v_add_u32 v3, v62, v63              ; Q voffset")
        for r in range(4):
            e("  v_add_u32 v%d, %d, v%d" % (self.V_VR + r, r * self.amap["gs"], self.V_VOFF))
        e("  v_lshrrev_b32 v62, 3, v61           ; h")
        e("  v_lshl_add_u32 v62, v60, 1, v62     ; g*2+h")
        e("  v_lshlrev_b32 v62, 4, v62")
        e("  s_mul_i32 s36, s3, %d" % (NT * 128))
        e("  v_add_u32 v%d, s36, v62" % self.V_LA)
        e("  v_and_b32 v62, 1, v61")
        e("  v_cmp_eq_u32 vcc, 1, v62")
        e("  v_mov_b32 v62, 0xffff")
        e("  v_mov_b32 v63, 0xffff0000")
        e("  v_cndmask_b32 v62, v62, v63, vcc")
        e("  v_bfe_u32 v63, v61, 1, 2             ; (n&7)>>1")
        for rr in range(4):
            e("  v_cmp_eq_u32 vcc, %d, v63" % rr)
            e("  s_nop 1")
            e("  v_cndmask_b32 v%d, 0, v62, vcc" % (self.V_MASK + rr))
        e("  s_mov_b32 s34, %s" % hexf(C_SCALE))
        e("  s_mov_b32 s35, %s" % hexf(-C_SCALE))
        e("  v_mov_b32 v%d, 0xff800000" % self.V_TM)
        e("  v_mov_b32 v%d, 0xff800000" % self.V_ST)
        for r in range(4):
            e("  v_mov_b32 v%d, 0" % (self.V_VT + r))
        e("  s_waitcnt lgkmcnt(0)")
        e("  s_lshl_b32 s36, s22, 9")
        e("  s_add_u32 s4, s4, s36")
        e("  s_addc_u32 s5, s5, 0")
        for t in range(4 if self.kmode == 1 else 1):
            e("  global_load_dwordx4 v[%d:%d], v3, s[4:5] offset:%d" % (self.V_Q + 4 * t, self.V_Q + 4 * t + 3, t * 64))
        e("  s_lshl_b32 s36, s22, 21")
        e("  s_mul_i32 s37, s23, %d" % self.WGBYTES)
        e("  s_add_u32 s36, s36, s37")
        e("  s_mul_i32 s37, s3, %d" % self.amap["ws"])
        e("  s_add_u32 s36, s36, s37")
        e("  s_add_u32 s24, s6, s36")
        e("  s_addc_u32 s25, s7, 0")
        e("  s_and_b32 s25, s25, 0xffff")
        e("  s_sub_u32 s26, %d, s37" % self.WGBYTES)
        e("  s_mov_b32 s27, 0x20000")
        e("  s_add_u32 s28, s8, s36")
        e("  s_addc_u32 s29, s9, 0")
        e("  s_and_b32 s29, s29, 0xffff")
        e("  s_mov_b32 s30, s26")
        e("  s_mov_b32 s31, 0x20000")
        e("  s_or_b32 s38, s23, s3")
        e("  s_cmp_lg_u32 s38, 0")
        e("  s_cbranch_scc1 L_notree_issue")
        e("  s_lshl_b32 s36, s22, 8              ; pair*256")
        e("  s_add_u32 s10, s10, s36")
        e("  s_addc_u32 s11, s11, 0")
        e("  s_add_u32 s12, s12, s36")
        e("  s_addc_u32 s13, s13, 0")
        if self.kmode == 1:
            e("  v_lshlrev_b32 v62, 4, v60           ; g*16")
            for t in range(4):
                e("  global_load_dwordx4 v[%d:%d], v62, s[10:11] offset:%d" % (self.V_B + 4 * t, self.V_B + 4 * t + 3, t * 64))
        else:
            e("  v_and_b32 v63, 3, v61")
            e("  v_lshlrev_b32 v63, 4, v63")
            e("  v_lshl_add_u32 v62, v60, 6, v63     ; g*64 + s*16")
            e("  global_load_dwordx4 v[%d:%d], v62, s[10:11]" % (self.V_B + 4, self.V_B + 7))
        e("  v_and_b32 v63, 7, v61")
        e("  v_lshlrev_b32 v63, 1, v63")
        e("  v_lshl_add_u32 v63, v60, 6, v63")
        for r in range(4):
            e("  global_load_ushort v%d, v63, s[12:13] offset:%d" % (self.V_VT + r, r * 16))
        e("  s_lshr_b32 s36, s22, 4")
        e("  s_lshl_b32 s37, s36, 1")
        e("  s_and_b32 s37, s37, 0xfffffffc")
        e("  s_load_dword s39, s[14:15], s37")
        e("L_notree_issue:")
        e("  s_mov_b32 s70, 0")
        for j in range(R):
            self.calc_off()
            self.issue_k(j)
        e("  s_cmp_lg_u32 s38, 0")
        e("  s_cbranch_scc1 L_notree")
        e("  s_waitcnt lgkmcnt(0)")
        e("  s_and_b32 s36, s36, 1")
        e("  s_lshl_b32 s36, s36, 4")
        e("  s_lshr_b32 s39, s39, s36")
        e("  s_lshl_b32 s39, s39, 16")
        e("  s_waitcnt vmcnt(%d)" % (4 * R))
        if self.kmode == 1:
            self.qk(self.V_B, self.V_SA)
            e("  s_nop 7")
            e("  v_sub_f32 v62, 1.0, s39")
            e("  v_mul_f32 v62, %s, v62" % hexf(-1e9 * math.sqrt(128.0)))
            e("  v_add_f32 v%d, v%d, v62" % (self.V_ST, self.V_SA))
        else:
            e("  v_mov_b32 v%d, s34" % self.V_C)
            e("  v_mfma_f32_16x16x32_bf16 v[%d:%d], v[%d:%d], v[%d:%d], 0" % (self.V_D, self.V_D + 3, self.V_B + 4, self.V_B + 7, self.V_Q, self.V_Q + 3))
            e("  s_nop 7")
            self.reduce_dpp(self.V_D, self.V_SA)
            e("  v_sub_f32 v62, 1.0, s39")
            e("  v_mul_f32 v62, %s, v62" % hexf(-1e9 * math.log2(math.e)))
            e("  v_add_f32 v%d, v%d, v62" % (self.V_ST, self.V_SA))
        for r in range(4):
            e("  v_lshlrev_b32 v%d, 16, v%d" % (self.V_VT + r, self.V_VT + r))
        e("L_notree:")
        if self.kmode == 2:
            e("  v_mov_b32 v%d, s34" % self.V_C)
        if self.stamp:
            e("  s_waitcnt vmcnt(%d)" % (4 * (R - 1)))
            e("  s_memrealtime s[46:47]")
            e("  s_waitcnt lgkmcnt(0)")
        n1 = NT // R - 1
        if n1 > 0:
            e("  s_mov_b32 s33, %d" % n1)
            e("L_p1:")
            for j in range(R): self.ktile(j, 'k')
            e("  v_add_u32 v%d, %d, v%d" % (self.V_LA, R * 128, self.V_LA))
            e("  s_sub_u32 s33, s33, 1")
            e("  s_cmp_lg_u32 s33, 0")
            e("  s_cbranch_scc1 L_p1")
        e("  s_mov_b32 s70, 0")
        for j in range(R): self.ktile(j, 'v')
        if self.stamp:
            e("  s_memrealtime s[58:59]")
        tm, t1, m = self.V_TM, self.V_T1, self.V_M
        e("  v_subrev_u32 v%d, %d, v%d" % (self.V_LA, (NT - R) * 128, self.V_LA))
        e("  v_mov_b32 v%d, v%d" % (t1, tm))
        e("  s_nop 1")
        e("  v_permlane16_swap_b32 v%d, v%d" % (tm, t1))
        e("  s_nop 1")
        e("  v_max_f32 v%d, v%d, v%d" % (tm, tm, t1))
        e("  v_mov_b32 v%d, v%d" % (t1, tm))
        e("  s_nop 1")
        e("  v_permlane32_swap_b32 v%d, v%d" % (tm, t1))
        e("  s_nop 1")
        e("  v_max_f32 v%d, v%d, v%d" % (tm, tm, t1))
        e("  v_max_f32 v%d, v%d, v%d" % (m, tm, self.V_ST))
        if self.kmode == 1:
            e("  v_mul_f32 v%d, s35, v%d" % (self.V_NMC, m))
            e("  v_fma_f32 v%d, v%d, s34, v%d" % (t1, self.V_ST, self.V_NMC))
        else:
            e("  v_sub_f32 v%d, 0, v%d" % (self.V_NMC, m))
            e("  v_add_f32 v%d, v%d, v%d" % (t1, self.V_ST, self.V_NMC))
        e("  v_exp_f32 v%d, v%d" % (t1, t1))
        e("  v_cmp_gt_u32 vcc, 16, v%d" % lane)
        e("  s_nop 1")
        e("  v_cndmask_b32 v%d, 0, v%d, vcc" % (self.V_L, t1))
        for r in range(4):
            e("  v_mul_f32 v%d, v%d, v%d" % (self.V_O + r, t1, self.V_VT + r))
        e("  s_waitcnt lgkmcnt(0)")
        e("  ds_read_b128 v[%d:%d], v%d" % (self.V_SA, self.V_SA + 3, self.V_LA))
        if n1 > 0:
            e("  s_mov_b32 s33, %d" % n1)
            e("L_p2:")
            for j in range(R): self.vtile(j, True, 4 * (R - 1), False)
            e("  v_add_u32 v%d, %d, v%d" % (self.V_LA, R * 128, self.V_LA))
            e("  s_sub_u32 s33, s33, 1")
            e("  s_cmp_lg_u32 s33, 0")
            e("  s_cbranch_scc1 L_p2")
        for j in range(R): self.vtile(j, False, 4 * (R - 1 - j), j == R - 1)
        if self.stamp:
            e("  s_memrealtime s[48:49]")
            e("  s_waitcnt lgkmcnt(0)")
            self.store_stamps(False)
        l = self.V_L
        e("  v_mov_b32 v%d, v%d" % (t1, l))
        e("  s_nop 1")
        e("  v_permlane16_swap_b32 v%d, v%d" % (l, t1))
        e("  s_nop 1")
        e("  v_add_f32 v%d, v%d, v%d" % (l, l, t1))
        e("  v_mov_b32 v%d, v%d" % (t1, l))
        e("  s_nop 1")
        e("  v_permlane32_swap_b32 v%d, v%d" % (l, t1))
        e("  s_nop 1")
        e("  v_add_f32 v%d, v%d, v%d" % (l, l, t1))
        e("  v_lshrrev_b32 v60, 4, v%d" % lane)
        e("  v_and_b32 v61, 15, v%d" % lane)
        e("  v_lshrrev_b32 v62, 3, v61")
        e("  v_lshlrev_b32 v62, 9, v62")
        e("  v_lshl_add_u32 v62, v60, 7, v62")
        e("  v_and_b32 v63, 7, v61")
        e("  v_lshl_add_u32 v62, v63, 2, v62")
        e("  s_lshl_b32 s36, s3, 10")
        e("  s_add_u32 s36, s36, %d" % self.EP)
        e("  v_add_u32 v62, s36, v62")
        for r in range(4):
            e("  ds_write_b32 v62, v%d offset:%d" % (self.V_O + r, r * 32))
        e("  v_lshrrev_b32 v63, 3, v61")
        e("  v_lshlrev_b32 v63, 3, v63")
        e("  s_lshl_b32 s36, s3, 4")
        e("  s_add_u32 s36, s36, %d" % (self.EP + W * 1024))
        e("  v_add_u32 v63, s36, v63")
        e("  v_mov_b32 v60, v%d" % m)
        e("  v_mov_b32 v61, v%d" % l)
        e("  ds_write_b64 v63, v[60:61]")
        e("  s_waitcnt vmcnt(0) lgkmcnt(0)")
        e("  s_barrier")
        e("  s_cmp_lg_u32 s3, 0")
        e("  s_cbranch_scc1 L_end")
        if self.stamp: e("  s_memrealtime s[60:61]")
        e("  v_lshlrev_b32 v1, 4, v%d             ; lane*16" % lane)
        e("  v_lshrrev_b32 v2, 5, v%d" % lane)
        e("  v_lshlrev_b32 v2, 3, v2              ; h*8")
        e("  v_add_u32 v2, %d, v2" % (self.EP + W * 1024))
        e("  v_add_u32 v3, %d, v1" % self.EP)
        OB, MB = 76, 76 + 4 * W
        for w in range(W):
            e("  ds_read_b64 v[%d:%d], v2 offset:%d" % (MB + 2 * w, MB + 2 * w + 1, w * 16))
        for w in range(W):
            e("  ds_read_b128 v[%d:%d], v3 offset:%d" % (OB + 4 * w, OB + 4 * w + 3, w * 1024))
        e("  s_waitcnt lgkmcnt(0)")
        self.merge(W, OB, MB, 4, 8)
        e("  s_mul_i32 s36, s22, %d" % S)
        e("  s_add_u32 s36, s36, s23")
        e("  s_lshl_b32 s36, s36, 11")
        e("  s_add_u32 s40, s20, s36")
        e("  s_addc_u32 s41, s21, 0")
        e("  v_mov_b32 v10, 0")
        e("  v_mov_b32 v11, 0")
        e("  global_store_dwordx4 v1, v[4:7], s[40:41] sc1")
        e("  global_store_dwordx4 v1, v[8:11], s[40:41] offset:1024 sc1")
        e("  s_waitcnt vmcnt(0)")
        if self.stamp: e("  s_memrealtime s[62:63]")
        e("  s_lshr_b32 s36, s22, 1")
        e("  s_lshl_b32 s36, s36, 2")
        e("  s_and_b32 s37, s22, 1")
        e("  s_lshl_b32 s37, s37, 4")
        e("  s_lshl_b32 s42, 1, s37")
        e("  v_mov_b32 v12, s36")
        e("  v_mov_b32 v13, s42")
        e("  s_mov_b64 exec, 1")
        e("  global_atomic_add v14, v12, v13, s[18:19] sc0")
        e("  s_waitcnt vmcnt(0)")
        if self.stamp: e("  s_memrealtime s[64:65]")
        e("  v_readfirstlane_b32 s43, v14")
        e("  s_mov_b64 exec, -1")
        e("  s_nop 3")
        e("  s_lshr_b32 s43, s43, s37")
        e("  s_and_b32 s43, s43, 0xffff")
        e("  s_cmp_lg_u32 s43, %d" % (S - 1))
        e("  s_cbranch_scc1 L_end")
        self.final_combine("sc1")
        e("L_end:")
        if self.stamp:
            e("  s_cmp_lg_u32 s3, 0")
            e("  s_cbranch_scc1 L_exit")
            e("  s_waitcnt vmcnt(0)")
            e("  s_memrealtime s[50:51]")
            e("  s_waitcnt lgkmcnt(0)")
            self.store_stamps(True)
        e("L_exit:")
        e("  s_endpgm")
        e('.section .rodata,"a"')
        e(".p2align 6")
        e(".amdhsa_kernel %s_kernel" % NAME)
        nv = self.nvgpr()
        e("  .amdhsa_next_free_vgpr %d" % nv)
        e("  .amdhsa_next_free_sgpr 80")
        e("  .amdhsa_accum_offset %d" % ((nv + 3) // 4 * 4))
        e("  .amdhsa_group_segment_fixed_size 0")
        e("  .amdhsa_kernarg_size 72")
        e("  .amdhsa_user_sgpr_count 2")
        e("  .amdhsa_user_sgpr_kernarg_segment_ptr 1")
        e("  .amdhsa_system_sgpr_workgroup_id_x 1")
        e(".end_amdhsa_kernel")
        return "\n".join(self.lines) + "\n"

    def store_stamps(self, final):
        e = self.e
        e("  s_mul_i32 s52, s2, %d" % self.W)
        e("  s_add_u32 s52, s52, s3")
        e("  s_lshl_b32 s52, s52, 6")
        e("  s_add_u32 s52, s52, 0x20000000")
        e("  s_add_u32 s54, s20, s52")
        e("  s_addc_u32 s55, s21, 0")
        if not final:
            e("  v_mov_b32 v60, s44"); e("  v_mov_b32 v61, s46"); e("  v_mov_b32 v62, s48"); e("  v_mov_b32 v63, s2")
            e("  v_mov_b32 v3, 0")
            e("  global_store_dwordx4 v3, v[60:63], s[54:55]")
            e("  v_mov_b32 v64, s58")
            e("  global_store_dword v3, v64, s[54:55] offset:48")
            for r in range(60, 68): e("  s_mov_b32 s%d, 0" % r)
        else:
            e("  v_mov_b32 v60, s50")
            e("  s_getreg_b32 s56, hwreg(HW_REG_XCC_ID)")
            e("  s_getreg_b32 s57, hwreg(HW_REG_HW_ID)")
            e("  v_mov_b32 v61, s56"); e("  v_mov_b32 v62, s57"); e("  v_mov_b32 v63, 0"); e("  v_mov_b32 v3, 0")
            e("  global_store_dwordx4 v3, v[60:63], s[54:55] offset:16")
            e("  v_mov_b32 v64, s60"); e("  v_mov_b32 v65, s62"); e("  v_mov_b32 v66, s64"); e("  v_mov_b32 v67, s66")
            e("  global_store_dwordx4 v3, v[64:67], s[54:55] offset:32")

    def merge(self, n, OB, MB, OD, MD):
        e = self.e
        e("  v_mov_b32 v%d, v%d" % (MD, MB))
        for w in range(1, n): e("  v_max_f32 v%d, v%d, v%d" % (MD, MD, MB + 2 * w))
        for w in range(n): e("  v_sub_f32 v%d, v%d, v%d" % (MB + 2 * w, MB + 2 * w, MD))
        if self.kmode == 1:
            for w in range(n): e("  v_mul_f32 v%d, s34, v%d" % (MB + 2 * w, MB + 2 * w))
        for w in range(n): e("  v_exp_f32 v%d, v%d" % (MB + 2 * w, MB + 2 * w))
        e("  s_nop 0")
        e("  v_mul_f32 v%d, v%d, v%d" % (MD + 1, MB, MB + 1))
        for w in range(1, n): e("  v_fmac_f32 v%d, v%d, v%d" % (MD + 1, MB + 2 * w, MB + 2 * w + 1))
        for r in range(4): e("  v_mul_f32 v%d, v%d, v%d" % (OD + r, MB, OB + r))
        for w in range(1, n):
            for r in range(4): e("  v_fmac_f32 v%d, v%d, v%d" % (OD + r, MB + 2 * w, OB + 4 * w + r))

    def final_combine(self, pol):
        e = self.e; S = self.S
        e("  s_mul_i32 s36, s22, %d" % (S * 2048))
        e("  s_add_u32 s40, s20, s36")
        e("  s_addc_u32 s41, s21, 0")
        OB = 76; MB = 76 + 4 * S
        for s in range(S):
            off = s * 2048
            if off + 1024 + 16 <= 4095:
                e("  global_load_dwordx4 v[%d:%d], v1, s[40:41] offset:%d %s" % (OB + 4 * s, OB + 4 * s + 3, off, pol))
                e("  global_load_dwordx2 v[%d:%d], v1, s[40:41] offset:%d %s" % (MB + 2 * s, MB + 2 * s + 1, off + 1024, pol))
            else:
                e("  v_add_u32 v3, %d, v1" % off)
                e("  global_load_dwordx4 v[%d:%d], v3, s[40:41] %s" % (OB + 4 * s, OB + 4 * s + 3, pol))
                e("  global_load_dwordx2 v[%d:%d], v3, s[40:41] offset:1024 %s" % (MB + 2 * s, MB + 2 * s + 1, pol))
        e("  s_waitcnt vmcnt(0)")
        if self.stamp: e("  s_memrealtime s[66:67]")
        self.merge(S, OB, MB, 4, 8)
        e("  v_rcp_f32 v9, v9")
        e("  s_nop 0")
        for r in range(4): e("  v_mul_f32 v%d, v%d, v9" % (4 + r, 4 + r))
        e("  v_cvt_pk_bf16_f32 v4, v4, v5")
        e("  v_cvt_pk_bf16_f32 v5, v6, v7")
        e("  s_lshl_b32 s36, s22, 9")
        e("  s_add_u32 s16, s16, s36")
        e("  s_addc_u32 s17, s17, 0")
        e("  v_lshrrev_b32 v2, 1, v1             ; lane*8")
        e("  global_store_dwordx2 v2, v[4:5], s[16:17]")

if __name__ == "__main__":
    ap = argparse.ArgumentParser()
    ap.add_argument("-o", default="cdna_kernels/%s.s" % NAME)
    ap.add_argument("--S", type=int, default=2)
    ap.add_argument("--W", type=int, default=4)
    ap.add_argument("--R", type=int, default=8)
    ap.add_argument("--pol", default="nt")
    ap.add_argument("--map", type=int, default=0)
    ap.add_argument("--stamp", action="store_true")
    ap.add_argument("--ldsmin", type=int, default=98304)
    ap.add_argument("--amap", default="")
    ap.add_argument("--kmode", type=int, default=1)
    ap.add_argument("--kpol", default=None)
    a = ap.parse_args()
    g = Gen2(S=a.S, W=a.W, R=a.R, pol=a.pol, mapmode=a.map, stamp=a.stamp, ldsmin=a.ldsmin, amap=parse_amap(a.amap), kmode=a.kmode, kpol=a.kpol)
    open(a.o, "w").write(g.build())
    print("wrote", a.o, "vgprs", g.nvgpr(), "lds", g.lds)
```

```python
import struct, sys, math, argparse
sys.path.insert(0, "gen")
from gen import NAME, HEADER, hexf, C_SCALE

class Gen3:
    V_KOFF, V_VOFF = 1, 2
    V_Q = 4
    V_CL = 8
    V_ONE = 9; V_ZERO = 10; V_FLAG = 11
    V_MASK = 20; V_O = 24; V_SA = 28; V_P = 32; V_B = 36; V_D = 36
    V_M, V_NM, V_L, V_TM, V_T1, V_ST, V_LA, V_LANE = 52, 53, 54, 55, 56, 57, 58, 59
    V_C = 60
    V_VT = 64; V_SB = 68; RING = 72
    W = 4; S = 2; R = 4

    def __init__(self, NTS=56, pol="nt", mapmode=4, stamp=False, ldsmin=98304, nopool=False):
        self.NTS, self.pol, self.mapmode, self.stamp, self.nopool = NTS, pol, mapmode, stamp, nopool
        assert NTS % self.R == 0
        self.PU = (64 - NTS) * 4 // 2
        self.NU = 2 * self.PU
        self.SC_BYTES = self.W * NTS * 128
        self.EP = self.SC_BYTES
        self.lds = max(self.EP + self.W * 1024 + self.W * 16, ldsmin)
        self.lines = []

    def e(self, s): self.lines.append(s)
    def slot(self, j): return self.RING + 16 * j
    def nvgpr(self): return max(self.RING + 16 * self.R, 76 + 6 * self.W + 2)

    def ld_k(self, j, srd, soff):
        k = self.slot(j)
        for r in range(4):
            self.e("  buffer_load_dwordx4 v[%d:%d], v%d, %s, %s offen offset:%d %s" %
                   (k + 4 * r, k + 4 * r + 3, self.V_KOFF, srd, soff, r * 1024, self.pol))
    def ld_v(self, j, srd, soff):
        v = self.slot(j)
        for r in range(4):
            self.e("  buffer_load_dwordx4 v[%d:%d], v%d, %s, %s offen offset:%d %s" %
                   (v + 4 * r, v + 4 * r + 3, self.V_VOFF, srd, soff, r * 1024, self.pol))
    def next_static(self):
        self.e("  s_lshl_b32 s68, s70, 14")
        self.e("  s_add_u32 s70, s70, 1")

    def qk(self, j):
        k, q, d = self.slot(j), self.V_Q, self.V_D
        for r in range(4):
            self.e("  v_mfma_f32_16x16x32_bf16 v[%d:%d], v[%d:%d], v[%d:%d], 0" %
                   (d + 4 * r, d + 4 * r + 3, k + 4 * r, k + 4 * r + 3, q, q + 3))
    def reduce_dpp(self, d, dst):
        self.e("  v_mul_f32_dpp v%d, v%d, v%d quad_perm:[0,0,0,0] row_mask:0xf bank_mask:0xf" % (dst, d, self.V_C))
        for s in range(1, 4):
            self.e("  v_fmac_f32_dpp v%d, v%d, v%d quad_perm:[%d,%d,%d,%d] row_mask:0xf bank_mask:0xf" %
                   (dst, d + s, self.V_C, s, s, s, s))
    def softmax_p(self, x, sub_m):
        p, b, mk, l = self.V_P, self.V_B, self.V_MASK, self.V_L
        for r in range(4):
            if sub_m: self.e("  v_sub_f32 v%d, v%d, v%d" % (p + r, x + r, self.V_M))
            else:     self.e("  v_add_f32 v%d, v%d, v%d" % (p + r, x + r, self.V_NM))
        for r in range(4): self.e("  v_exp_f32 v%d, v%d" % (p + r, p + r))
        self.e("  s_nop 0")
        for r in range(4): self.e("  v_add_f32 v%d, v%d, v%d" % (l, l, p + r))
        for r in range(4): self.e("  v_cvt_pk_bf16_f32 v%d, v%d, v%d" % (p + r, p + r, p + r))
        for r in range(4):
            for rr in range(4):
                self.e("  v_and_b32 v%d, v%d, v%d" % (b + 4 * r + rr, p + r, mk + rr))
    def pv(self, j):
        v, b, o = self.slot(j), self.V_B, self.V_O
        for r in range(4):
            self.e("  v_mfma_f32_16x16x32_bf16 v[%d:%d], v[%d:%d], v[%d:%d], v[%d:%d]" %
                   (o, o + 3, v + 4 * r, v + 4 * r + 3, b + 4 * r, b + 4 * r + 3, o, o + 3))

    def ktile(self, j, nxt):
        s = self.V_SA if j % 2 == 0 else self.V_SB
        tm = self.V_TM
        self.e("  s_waitcnt vmcnt(12)")
        self.qk(j)
        self.next_static()
        if nxt == 'k': self.ld_k(j, "s[24:27]", "s68")
        else: self.ld_v(j, "s[28:31]", "s68")
        self.e("  s_nop 1")
        for r in range(4): self.reduce_dpp(self.V_D + 4 * r, s + r)
        self.e("  s_nop 0")
        self.e("  v_max3_f32 v%d, v%d, v%d, v%d" % (tm, s, s + 1, tm))
        self.e("  v_max3_f32 v%d, v%d, v%d, v%d" % (tm, s + 2, s + 3, tm))
        self.e("  ds_write_b128 v%d, v[%d:%d] offset:%d" % (self.V_LA, s, s + 3, j * 128))

    def vtile_head(self, j, last):
        s = self.V_SA if j % 2 == 0 else self.V_SB
        sn = self.V_SB if j % 2 == 0 else self.V_SA
        if not last:
            self.e("  ds_read_b128 v[%d:%d], v%d offset:%d" % (sn, sn + 3, self.V_LA, (j + 1) * 128))
            self.e("  s_waitcnt lgkmcnt(1)")
        else:
            self.e("  s_waitcnt lgkmcnt(0)")
        self.softmax_p(s, False)

    def claim_atomic(self):
        self.e("  s_mov_b64 exec, 1")
        self.e("  global_atomic_add v%d, v%d, v%d, s[86:87] sc0" % (self.V_CL, self.V_ZERO, self.V_ONE))
        self.e("  s_mov_b64 exec, -1")

    def read_claim(self):
        e = self.e
        e("  v_readfirstlane_b32 s82, v%d" % self.V_CL)
        e("  s_nop 3")
        e("  s_or_b32 s82, s82, s85")
        e("  s_cmp_ge_u32 s82, %d" % self.PU)
        e("  s_cselect_b32 s83, %d, 0" % ((1 << 20) - self.PU * 8192))
        e("  s_lshl_b32 s84, s82, 13")
        e("  s_add_u32 s83, s83, s84")
        e("  s_add_u32 s83, s83, %d" % (self.NTS * 16384))
        e("  s_cmp_lt_u32 s82, %d" % self.NU)
        e("  s_cselect_b32 s83, s83, 0x7ff00000")
        e("  s_add_u32 s84, s83, 4096")

    def rescale(self, label, back):
        m, l, tm, t1, o = self.V_M, self.V_L, self.V_TM, self.V_T1, self.V_O
        e = self.e
        e("%s:" % label)
        e("  v_mov_b32 v%d, v%d" % (t1, tm))
        e("  s_nop 1")
        e("  v_permlane16_swap_b32 v%d, v%d" % (tm, t1))
        e("  s_nop 1")
        e("  v_max_f32 v%d, v%d, v%d" % (tm, tm, t1))
        e("  v_mov_b32 v%d, v%d" % (t1, tm))
        e("  s_nop 1")
        e("  v_permlane32_swap_b32 v%d, v%d" % (tm, t1))
        e("  s_nop 1")
        e("  v_max_f32 v%d, v%d, v%d" % (tm, tm, t1))
        e("  v_max_f32 v%d, v%d, v%d" % (tm, tm, m))
        e("  v_sub_f32 v%d, v%d, v%d" % (t1, m, tm))
        e("  v_exp_f32 v%d, v%d" % (t1, t1))
        e("  v_mov_b32 v%d, v%d" % (m, tm))
        e("  s_nop 0")
        e("  v_mul_f32 v%d, v%d, v%d" % (l, l, t1))
        for r in range(4): e("  v_mul_f32 v%d, v%d, v%d" % (o + r, o + r, t1))
        e("  s_branch %s" % back)

    def tile3(self, jk, jv, wk, wv, offreg, uid, pre=None):
        x, tm = self.V_SA, self.V_TM
        e = self.e
        e("  s_waitcnt vmcnt(%d)" % wk)
        if pre: pre()
        self.qk(jk)
        self.ld_k(jk, "s[72:75]", offreg)
        e("  s_nop 3")
        for r in range(4): self.reduce_dpp(self.V_D + 4 * r, x + r)
        e("  s_nop 0")
        e("  v_max3_f32 v%d, v%d, v%d, v%d" % (tm, x, x + 1, x + 2))
        e("  v_max_f32 v%d, v%d, v%d" % (tm, tm, x + 3))
        e("  v_cmp_gt_f32 vcc, v%d, v%d" % (tm, self.V_M))
        e("  s_cbranch_vccnz L_resc_%s" % uid)
        e("L_back_%s:" % uid)
        self.softmax_p(x, True)
        e("  s_waitcnt vmcnt(%d)" % wv)
        self.pv(jv)
        self.ld_v(jv, "s[76:79]", offreg)

    def build(self):
        S, W, R, NTS = self.S, self.W, self.R, self.NTS
        e = self.e
        lane = self.V_LANE
        e(HEADER.rstrip("\n"))
        e("; @launch grid=(256,1,1) block=(256,1,1) lds=%d" % self.lds)
        e('.amdgcn_target "amdgcn-amd-amdhsa--gfx950"')
        e(".text")
        e(".globl %s_kernel" % NAME)
        e(".p2align 8")
        e(".type %s_kernel,@function" % NAME)
        e("%s_kernel:" % NAME)
        e("  s_cmp_ge_u32 s2, 256")
        e("  s_cbranch_scc1 L_exit")
        if self.stamp: e("  s_memrealtime s[44:45]")
        e("  s_load_dwordx16 s[4:19], s[0:1], 0")
        e("  s_load_dwordx2 s[20:21], s[0:1], 64")
        e("  v_and_b32 v%d, 63, v0" % lane)
        e("  v_lshrrev_b32 v3, 6, v0")
        e("  s_nop 0")
        e("  v_readfirstlane_b32 s3, v3")
        if self.mapmode == 0:
            e("  s_and_b32 s22, s2, 127"); e("  s_lshr_b32 s23, s2, 7")
        elif self.mapmode == 1:
            e("  s_lshr_b32 s22, s2, 1"); e("  s_and_b32 s23, s2, 1")
        elif self.mapmode == 4:
            e("  s_and_b32 s22, s2, 7"); e("  s_lshl_b32 s22, s22, 2")
            e("  s_lshr_b32 s23, 0x57641320, s22")
            e("  s_and_b32 s36, s23, 7")
            e("  s_and_b32 s23, s36, 1")
            e("  s_lshr_b32 s36, s36, 1")
            e("  s_lshr_b32 s22, s2, 3"); e("  s_lshl_b32 s22, s22, 2")
            e("  s_add_u32 s22, s22, s36")
        elif self.mapmode >= 5:
            e("  s_and_b32 s22, s2, 7"); e("  s_lshl_b32 s22, s22, 2")
            e("  s_lshr_b32 s23, 0x57641320, s22")
            e("  s_and_b32 s36, s23, 7")
            e("  s_and_b32 s23, s36, 1             ; s")
            e("  s_lshr_b32 s36, s36, 1            ; k")
            e("  s_lshr_b32 s37, s2, 3             ; j")
            kx, sx = {5: (0, 2), 6: (3, 0), 7: (None, 0), 8: (None, 4), 9: (1, 0)}[self.mapmode]
            if kx is not None:
                e("  s_lshr_b32 s39, s37, %d" % kx); e("  s_and_b32 s39, s39, 3"); e("  s_xor_b32 s36, s36, s39")
            e("  s_lshr_b32 s39, s37, %d" % sx); e("  s_and_b32 s39, s39, 1"); e("  s_xor_b32 s23, s23, s39")
            e("  s_lshl_b32 s22, s37, 2")
            e("  s_add_u32 s22, s22, s36")
        e("  v_lshrrev_b32 v60, 4, v%d            ; g" % lane)
        e("  v_and_b32 v61, 15, v%d               ; i / n" % lane)
        e("  v_lshlrev_b32 v%d, 4, v%d" % (self.V_VOFF, lane))
        e("  v_lshrrev_b32 v62, 2, v61")
        e("  v_lshlrev_b32 v62, 8, v62           ; kk*256")
        e("  v_and_b32 v63, 3, v61               ; s")
        e("  v_lshlrev_b32 v63, 4, v63           ; s*16")
        e("  v_lshl_add_u32 v63, v60, 6, v63     ; g*64 + s*16")
        e("  v_add_u32 v%d, v62, v63" % self.V_KOFF)
        e("  v_lshrrev_b32 v62, 3, v61")
        e("  v_lshlrev_b32 v62, 8, v62")
        e("  v_add_u32 v3, v62, v63              ; Q voffset")
        e("  v_lshrrev_b32 v62, 3, v61           ; h")
        e("  v_lshl_add_u32 v62, v60, 1, v62     ; g*2+h")
        e("  v_lshlrev_b32 v62, 4, v62")
        e("  s_mul_i32 s36, s3, %d" % (NTS * 128))
        e("  v_add_u32 v%d, s36, v62" % self.V_LA)
        e("  v_and_b32 v62, 1, v61")
        e("  v_cmp_eq_u32 vcc, 1, v62")
        e("  v_mov_b32 v62, 0xffff")
        e("  v_mov_b32 v63, 0xffff0000")
        e("  v_cndmask_b32 v62, v62, v63, vcc")
        e("  v_bfe_u32 v63, v61, 1, 2             ; (n&7)>>1")
        for rr in range(4):
            e("  v_cmp_eq_u32 vcc, %d, v63" % rr)
            e("  s_nop 1")
            e("  v_cndmask_b32 v%d, 0, v62, vcc" % (self.V_MASK + rr))
        e("  s_mov_b32 s34, %s" % hexf(C_SCALE))
        e("  v_mov_b32 v%d, 0xff800000" % self.V_TM)
        e("  v_mov_b32 v%d, 0xff800000" % self.V_ST)
        e("  v_mov_b32 v%d, 1" % self.V_ONE)
        e("  v_mov_b32 v%d, 0" % self.V_ZERO)
        e("  v_mov_b32 v%d, 0xff" % self.V_CL)
        for r in range(4): e("  v_mov_b32 v%d, 0" % (self.V_VT + r))
        e("  s_waitcnt lgkmcnt(0)")
        e("  s_lshl_b32 s36, s22, 9")
        e("  s_add_u32 s4, s4, s36")
        e("  s_addc_u32 s5, s5, 0")
        e("  global_load_dwordx4 v[%d:%d], v3, s[4:5]" % (self.V_Q, self.V_Q + 3))
        e("  s_lshl_b32 s36, s22, 21")
        e("  s_add_u32 s72, s6, s36")
        e("  s_addc_u32 s73, s7, 0")
        e("  s_and_b32 s73, s73, 0xffff")
        e("  s_mov_b32 s74, 0x200000")
        e("  s_mov_b32 s75, 0x20000")
        e("  s_add_u32 s76, s8, s36")
        e("  s_addc_u32 s77, s9, 0")
        e("  s_and_b32 s77, s77, 0xffff")
        e("  s_mov_b32 s78, 0x200000")
        e("  s_mov_b32 s79, 0x20000")
        e("  s_lshl_b32 s37, s23, 20")
        e("  s_add_u32 s36, s36, s37")
        e("  s_lshl_b32 s37, s3, 12")
        e("  s_add_u32 s36, s36, s37")
        e("  s_add_u32 s24, s6, s36")
        e("  s_addc_u32 s25, s7, 0")
        e("  s_and_b32 s25, s25, 0xffff")
        e("  s_sub_u32 s26, 0x100000, s37")
        e("  s_mov_b32 s27, 0x20000")
        e("  s_add_u32 s28, s8, s36")
        e("  s_addc_u32 s29, s9, 0")
        e("  s_and_b32 s29, s29, 0xffff")
        e("  s_mov_b32 s30, s26")
        e("  s_mov_b32 s31, 0x20000")
        e("  s_lshr_b32 s40, s22, 1")
        e("  s_lshl_b32 s40, s40, 2")
        e("  s_and_b32 s41, s22, 1")
        e("  s_lshl_b32 s41, s41, 4")
        e("  s_or_b32 s38, s23, s3")
        e("  s_cmp_lg_u32 s38, 0")
        e("  s_cbranch_scc1 L_notree_issue")
        e("  s_lshl_b32 s36, s22, 8              ; pair*256")
        e("  s_add_u32 s10, s10, s36")
        e("  s_addc_u32 s11, s11, 0")
        e("  s_add_u32 s12, s12, s36")
        e("  s_addc_u32 s13, s13, 0")
        e("  v_and_b32 v63, 3, v61")
        e("  v_lshlrev_b32 v63, 4, v63")
        e("  v_lshl_add_u32 v62, v60, 6, v63     ; g*64 + s*16")
        e("  global_load_dwordx4 v[%d:%d], v62, s[10:11]" % (self.V_B + 4, self.V_B + 7))
        e("  v_and_b32 v63, 7, v61")
        e("  v_lshlrev_b32 v63, 1, v63")
        e("  v_lshl_add_u32 v63, v60, 6, v63")
        for r in range(4):
            e("  global_load_ushort v%d, v63, s[12:13] offset:%d" % (self.V_VT + r, r * 16))
        e("  s_lshr_b32 s36, s22, 4")
        e("  s_lshl_b32 s37, s36, 1")
        e("  s_and_b32 s37, s37, 0xfffffffc")
        e("  s_load_dword s39, s[14:15], s37")
        e("L_notree_issue:")
        e("  s_mov_b32 s70, 0")
        for j in range(R):
            self.next_static()
            self.ld_k(j, "s[24:27]", "s68")
        e("  s_cmp_lg_u32 s38, 0")
        e("  s_cbranch_scc1 L_notree")
        e("  s_lshl_b32 s42, s22, 8")
        e("  s_add_u32 s42, s42, 0x100000")
        e("  s_add_u32 s86, s20, s42")
        e("  s_addc_u32 s87, s21, 0")
        e("  s_mov_b64 exec, 1")
        e("  global_store_dword v%d, v%d, s[86:87] sc1" % (self.V_ZERO, self.V_ZERO))
        e("  s_mov_b64 exec, -1")
        e("  s_waitcnt lgkmcnt(0)")
        e("  s_and_b32 s36, s36, 1")
        e("  s_lshl_b32 s36, s36, 4")
        e("  s_lshr_b32 s39, s39, s36")
        e("  s_lshl_b32 s39, s39, 16")
        e("  s_waitcnt vmcnt(0)")
        e("  s_lshl_b32 s42, 0x8000, s41")
        e("  v_mov_b32 v62, s40")
        e("  v_mov_b32 v63, s42")
        e("  s_mov_b64 exec, 1")
        e("  global_atomic_add v62, v63, s[18:19]")
        e("  s_mov_b64 exec, -1")
        e("  v_mov_b32 v%d, s34" % self.V_C)
        e("  v_mfma_f32_16x16x32_bf16 v[%d:%d], v[%d:%d], v[%d:%d], 0" % (self.V_D, self.V_D + 3, self.V_B + 4, self.V_B + 7, self.V_Q, self.V_Q + 3))
        e("  s_nop 7")
        self.reduce_dpp(self.V_D, self.V_SA)
        e("  v_sub_f32 v62, 1.0, s39")
        e("  v_mul_f32 v62, %s, v62" % hexf(-1e9 * math.log2(math.e)))
        e("  v_add_f32 v%d, v%d, v62" % (self.V_ST, self.V_SA))
        for r in range(4): e("  v_lshlrev_b32 v%d, 16, v%d" % (self.V_VT + r, self.V_VT + r))
        e("L_notree:")
        e("  v_mov_b32 v%d, s34" % self.V_C)
        if self.stamp:
            e("  s_waitcnt vmcnt(12)")
            e("  s_memrealtime s[46:47]")
            e("  s_waitcnt lgkmcnt(0)")
        n1 = NTS // R - 1
        e("  s_mov_b32 s33, %d" % n1)
        e("L_p1:")
        for j in range(R): self.ktile(j, 'k')
        e("  v_add_u32 v%d, %d, v%d" % (self.V_LA, R * 128, self.V_LA))
        e("  s_sub_u32 s33, s33, 1")
        e("  s_cmp_lg_u32 s33, 0")
        e("  s_cbranch_scc1 L_p1")
        e("  s_mov_b32 s70, 0")
        e("  v_mov_b32 v62, s40")
        e("  global_load_dword v%d, v62, s[18:19] sc1" % self.V_FLAG)
        for j in range(R): self.ktile(j, 'v')
        if self.stamp: e("  s_memrealtime s[58:59]")
        tm, t1, m = self.V_TM, self.V_T1, self.V_M
        e("  v_subrev_u32 v%d, %d, v%d" % (self.V_LA, (NTS - R) * 128, self.V_LA))
        e("  v_mov_b32 v%d, v%d" % (t1, tm))
        e("  s_nop 1")
        e("  v_permlane16_swap_b32 v%d, v%d" % (tm, t1))
        e("  s_nop 1")
        e("  v_max_f32 v%d, v%d, v%d" % (tm, tm, t1))
        e("  v_mov_b32 v%d, v%d" % (t1, tm))
        e("  s_nop 1")
        e("  v_permlane32_swap_b32 v%d, v%d" % (tm, t1))
        e("  s_nop 1")
        e("  v_max_f32 v%d, v%d, v%d" % (tm, tm, t1))
        e("  v_max_f32 v%d, v%d, v%d" % (m, tm, self.V_ST))
        e("  v_sub_f32 v%d, 0, v%d" % (self.V_NM, m))
        e("  v_add_f32 v%d, v%d, v%d" % (t1, self.V_ST, self.V_NM))
        e("  v_exp_f32 v%d, v%d" % (t1, t1))
        e("  v_cmp_gt_u32 vcc, 16, v%d" % lane)
        e("  s_nop 1")
        e("  v_cndmask_b32 v%d, 0, v%d, vcc" % (self.V_L, t1))
        for r in range(4): e("  v_mul_f32 v%d, v%d, v%d" % (self.V_O + r, t1, self.V_VT + r))
        e("  s_waitcnt vmcnt(16)")
        e("  v_readfirstlane_b32 s80, v%d" % self.V_FLAG)
        e("  s_nop 3")
        e("  s_lshr_b32 s80, s80, s41")
        e("  s_and_b32 s80, s80, 0x8000")
        if self.nopool: e("  s_mov_b32 s80, 0")
        e("  s_cmp_eq_u32 s38, 0")
        e("  s_cselect_b32 s80, 0x8000, s80")
        e("  s_lshl_b32 s42, s22, 8")
        e("  s_add_u32 s42, s42, 0x100000")
        e("  s_lshl_b32 s43, s2, 2")
        e("  s_add_u32 s43, s43, s3")
        e("  s_lshl_b32 s43, s43, 8")
        e("  s_add_u32 s43, s43, 0x200000")
        e("  s_cmp_lg_u32 s80, 0")
        e("  s_cselect_b32 s42, s42, s43")
        e("  s_cselect_b32 s85, 0, 0xff")
        e("  s_add_u32 s86, s20, s42")
        e("  s_addc_u32 s87, s21, 0")
        e("  s_waitcnt lgkmcnt(0)")
        e("  ds_read_b128 v[%d:%d], v%d" % (self.V_SA, self.V_SA + 3, self.V_LA))
        e("  s_mov_b32 s33, %d" % n1)
        e("L_p2:")
        e("  s_cmp_lg_u32 s33, 1")
        e("  s_cbranch_scc1 L_p2_noclaim")
        self.claim_atomic()
        e("L_p2_noclaim:")
        for j in range(R):
            self.vtile_head(j, False)
            e("  s_waitcnt vmcnt(12)")
            self.pv(j)
            self.next_static()
            self.ld_v(j, "s[28:31]", "s68")
        e("  v_add_u32 v%d, %d, v%d" % (self.V_LA, R * 128, self.V_LA))
        e("  s_sub_u32 s33, s33, 1")
        e("  s_cmp_lg_u32 s33, 0")
        e("  s_cbranch_scc1 L_p2")
        for j in range(R):
            self.vtile_head(j, j == R - 1)
            e("  s_waitcnt vmcnt(%d)" % (12 if j == 0 else 13))
            if j == 0:
                self.read_claim()
                self.claim_atomic()
            self.pv(j)
            off = "s83" if j < 2 else "s84"
            if j % 2 == 0: self.ld_k(j, "s[72:75]", off)
            else: self.ld_v(j, "s[76:79]", off)
        if self.stamp: e("  s_memrealtime s[90:91]")
        e("  s_mov_b32 s88, 0")
        e("  s_cmp_ge_u32 s82, %d" % self.NU)
        e("  s_cbranch_scc1 L_p3_done")
        e("L_p3:")
        e("  s_add_u32 s88, s88, 1")
        def pre():
            self.read_claim()
            self.claim_atomic()
        self.tile3(0, 1, 12, 13, "s83", "a", pre)
        self.tile3(2, 3, 13, 13, "s84", "b")
        e("  s_cmp_lt_u32 s82, %d" % self.NU)
        e("  s_cbranch_scc1 L_p3")
        e("L_p3_done:")
        if self.stamp:
            e("  s_memrealtime s[48:49]")
            e("  s_waitcnt lgkmcnt(0)")
            self.store_stamps(False)
        l = self.V_L
        e("  v_mov_b32 v%d, v%d" % (t1, l))
        e("  s_nop 1")
        e("  v_permlane16_swap_b32 v%d, v%d" % (l, t1))
        e("  s_nop 1")
        e("  v_add_f32 v%d, v%d, v%d" % (l, l, t1))
        e("  v_mov_b32 v%d, v%d" % (t1, l))
        e("  s_nop 1")
        e("  v_permlane32_swap_b32 v%d, v%d" % (l, t1))
        e("  s_nop 1")
        e("  v_add_f32 v%d, v%d, v%d" % (l, l, t1))
        e("  v_lshrrev_b32 v60, 4, v%d" % lane)
        e("  v_and_b32 v61, 15, v%d" % lane)
        e("  v_lshrrev_b32 v62, 3, v61")
        e("  v_lshlrev_b32 v62, 9, v62")
        e("  v_lshl_add_u32 v62, v60, 7, v62")
        e("  v_and_b32 v63, 7, v61")
        e("  v_lshl_add_u32 v62, v63, 2, v62")
        e("  s_lshl_b32 s36, s3, 10")
        e("  s_add_u32 s36, s36, %d" % self.EP)
        e("  v_add_u32 v62, s36, v62")
        for r in range(4): e("  ds_write_b32 v62, v%d offset:%d" % (self.V_O + r, r * 32))
        e("  v_lshrrev_b32 v63, 3, v61")
        e("  v_lshlrev_b32 v63, 3, v63")
        e("  s_lshl_b32 s36, s3, 4")
        e("  s_add_u32 s36, s36, %d" % (self.EP + W * 1024))
        e("  v_add_u32 v63, s36, v63")
        e("  v_mov_b32 v60, v%d" % m)
        e("  v_mov_b32 v61, v%d" % l)
        e("  ds_write_b64 v63, v[60:61]")
        e("  s_waitcnt vmcnt(0) lgkmcnt(0)")
        e("  s_barrier")
        e("  s_cmp_lg_u32 s3, 0")
        e("  s_cbranch_scc1 L_end")
        if self.stamp: e("  s_memrealtime s[60:61]")
        e("  v_lshlrev_b32 v1, 4, v%d             ; lane*16" % lane)
        e("  v_lshrrev_b32 v2, 5, v%d" % lane)
        e("  v_lshlrev_b32 v2, 3, v2              ; h*8")
        e("  v_add_u32 v2, %d, v2" % (self.EP + W * 1024))
        e("  v_add_u32 v3, %d, v1" % self.EP)
        OB, MB = 76, 76 + 4 * W
        for w in range(W): e("  ds_read_b64 v[%d:%d], v2 offset:%d" % (MB + 2 * w, MB + 2 * w + 1, w * 16))
        for w in range(W): e("  ds_read_b128 v[%d:%d], v3 offset:%d" % (OB + 4 * w, OB + 4 * w + 3, w * 1024))
        e("  s_waitcnt lgkmcnt(0)")
        self.merge(W, OB, MB, 4, 8)
        e("  s_lshl_b32 s36, s22, 1")
        e("  s_add_u32 s36, s36, s23")
        e("  s_lshl_b32 s36, s36, 11")
        e("  s_add_u32 s92, s20, s36")
        e("  s_addc_u32 s93, s21, 0")
        e("  v_mov_b32 v10, 0")
        e("  v_mov_b32 v11, 0")
        e("  global_store_dwordx4 v1, v[4:7], s[92:93] sc1")
        e("  global_store_dwordx4 v1, v[8:11], s[92:93] offset:1024 sc1")
        e("  s_waitcnt vmcnt(0)")
        if self.stamp: e("  s_memrealtime s[62:63]")
        e("  s_lshl_b32 s42, 1, s41")
        e("  v_mov_b32 v12, s40")
        e("  v_mov_b32 v13, s42")
        e("  s_mov_b64 exec, 1")
        e("  global_atomic_add v14, v12, v13, s[18:19] sc0")
        e("  s_waitcnt vmcnt(0)")
        if self.stamp: e("  s_memrealtime s[64:65]")
        e("  v_readfirstlane_b32 s43, v14")
        e("  s_mov_b64 exec, -1")
        e("  s_nop 3")
        e("  s_lshr_b32 s43, s43, s41")
        e("  s_and_b32 s43, s43, 0xff")
        e("  s_cmp_lg_u32 s43, %d" % (S - 1))
        e("  s_cbranch_scc1 L_end")
        self.final_combine("sc1")
        e("L_end:")
        if self.stamp:
            e("  s_cmp_lg_u32 s3, 0")
            e("  s_cbranch_scc1 L_exit")
            e("  s_waitcnt vmcnt(0)")
            e("  s_memrealtime s[50:51]")
            e("  s_waitcnt lgkmcnt(0)")
            self.store_stamps(True)
        e("L_exit:")
        e("  s_endpgm")
        self.rescale("L_resc_a", "L_back_a")
        self.rescale("L_resc_b", "L_back_b")
        e('.section .rodata,"a"')
        e(".p2align 6")
        e(".amdhsa_kernel %s_kernel" % NAME)
        nv = self.nvgpr()
        e("  .amdhsa_next_free_vgpr %d" % nv)
        e("  .amdhsa_next_free_sgpr 96")
        e("  .amdhsa_accum_offset %d" % ((nv + 3) // 4 * 4))
        e("  .amdhsa_group_segment_fixed_size 0")
        e("  .amdhsa_kernarg_size 72")
        e("  .amdhsa_user_sgpr_count 2")
        e("  .amdhsa_user_sgpr_kernarg_segment_ptr 1")
        e("  .amdhsa_system_sgpr_workgroup_id_x 1")
        e(".end_amdhsa_kernel")
        return "\n".join(self.lines) + "\n"

    def store_stamps(self, final):
        e = self.e
        e("  s_mul_i32 s52, s2, %d" % self.W)
        e("  s_add_u32 s52, s52, s3")
        e("  s_lshl_b32 s52, s52, 6")
        e("  s_add_u32 s52, s52, 0x20000000")
        e("  s_add_u32 s54, s20, s52")
        e("  s_addc_u32 s55, s21, 0")
        if not final:
            e("  v_mov_b32 v60, s44"); e("  v_mov_b32 v61, s46"); e("  v_mov_b32 v62, s48"); e("  v_mov_b32 v63, s2")
            e("  v_mov_b32 v3, 0")
            e("  global_store_dwordx4 v3, v[60:63], s[54:55]")
            e("  v_mov_b32 v64, s58"); e("  v_mov_b32 v65, s90"); e("  v_mov_b32 v66, s88"); e("  v_mov_b32 v67, 0")
            e("  global_store_dwordx4 v3, v[64:67], s[54:55] offset:48")
            for r in range(60, 68): e("  s_mov_b32 s%d, 0" % r)
            e("  s_nop 4")
        else:
            e("  v_mov_b32 v60, s50")
            e("  s_getreg_b32 s56, hwreg(HW_REG_XCC_ID)")
            e("  s_getreg_b32 s57, hwreg(HW_REG_HW_ID)")
            e("  v_mov_b32 v61, s56"); e("  v_mov_b32 v62, s57"); e("  v_mov_b32 v63, 0"); e("  v_mov_b32 v3, 0")
            e("  global_store_dwordx4 v3, v[60:63], s[54:55] offset:16")
            e("  v_mov_b32 v64, s60"); e("  v_mov_b32 v65, s62"); e("  v_mov_b32 v66, s64"); e("  v_mov_b32 v67, s66")
            e("  global_store_dwordx4 v3, v[64:67], s[54:55] offset:32")

    def merge(self, n, OB, MB, OD, MD):
        e = self.e
        e("  v_mov_b32 v%d, v%d" % (MD, MB))
        for w in range(1, n): e("  v_max_f32 v%d, v%d, v%d" % (MD, MD, MB + 2 * w))
        for w in range(n): e("  v_sub_f32 v%d, v%d, v%d" % (MB + 2 * w, MB + 2 * w, MD))
        for w in range(n): e("  v_exp_f32 v%d, v%d" % (MB + 2 * w, MB + 2 * w))
        e("  s_nop 0")
        e("  v_mul_f32 v%d, v%d, v%d" % (MD + 1, MB, MB + 1))
        for w in range(1, n): e("  v_fmac_f32 v%d, v%d, v%d" % (MD + 1, MB + 2 * w, MB + 2 * w + 1))
        for r in range(4): e("  v_mul_f32 v%d, v%d, v%d" % (OD + r, MB, OB + r))
        for w in range(1, n):
            for r in range(4): e("  v_fmac_f32 v%d, v%d, v%d" % (OD + r, MB + 2 * w, OB + 4 * w + r))

    def final_combine(self, pol):
        e = self.e; S = self.S
        e("  s_lshl_b32 s36, s22, 12")
        e("  s_add_u32 s92, s20, s36")
        e("  s_addc_u32 s93, s21, 0")
        OB = 76; MB = 76 + 4 * S
        for s in range(S):
            off = s * 2048
            e("  global_load_dwordx4 v[%d:%d], v1, s[92:93] offset:%d %s" % (OB + 4 * s, OB + 4 * s + 3, off, pol))
            e("  global_load_dwordx2 v[%d:%d], v1, s[92:93] offset:%d %s" % (MB + 2 * s, MB + 2 * s + 1, off + 1024, pol))
        e("  s_waitcnt vmcnt(0)")
        if self.stamp: e("  s_memrealtime s[66:67]")
        self.merge(S, OB, MB, 4, 8)
        e("  v_rcp_f32 v9, v9")
        e("  s_nop 0")
        for r in range(4): e("  v_mul_f32 v%d, v%d, v9" % (4 + r, 4 + r))
        e("  v_cvt_pk_bf16_f32 v4, v4, v5")
        e("  v_cvt_pk_bf16_f32 v5, v6, v7")
        e("  s_lshl_b32 s36, s22, 9")
        e("  s_add_u32 s16, s16, s36")
        e("  s_addc_u32 s17, s17, 0")
        e("  v_lshrrev_b32 v2, 1, v1             ; lane*8")
        e("  global_store_dwordx2 v2, v[4:5], s[16:17]")

if __name__ == "__main__":
    ap = argparse.ArgumentParser()
    ap.add_argument("-o", default="cdna_kernels/%s.s" % NAME)
    ap.add_argument("--nts", type=int, default=56)
    ap.add_argument("--pol", default="nt")
    ap.add_argument("--map", type=int, default=4)
    ap.add_argument("--stamp", action="store_true")
    ap.add_argument("--ldsmin", type=int, default=98304)
    ap.add_argument("--nopool", action="store_true")
    a = ap.parse_args()
    g = Gen3(NTS=a.nts, pol=a.pol, mapmode=a.map, stamp=a.stamp, ldsmin=a.ldsmin, nopool=a.nopool)
    open(a.o, "w").write(g.build())
    print("wrote", a.o, "vgprs", g.nvgpr(), "lds", g.lds, "NU", g.NU)
```

```python
import struct, sys, math, argparse
sys.path.insert(0, "gen")
from gen import NAME, HEADER, hexf, C_SCALE

class Gen3:
    V_KOFF, V_VOFF = 1, 2
    V_Q = 4
    V_CL = 8
    V_ONE = 9; V_ZERO = 10; V_FLAG = 11
    V_MASK = 20; V_O = 24; V_SA = 28; V_P = 32; V_B = 36; V_D = 36
    V_M, V_NM, V_L, V_TM, V_T1, V_ST, V_LA, V_LANE = 52, 53, 54, 55, 56, 57, 58, 59
    V_C = 60
    V_VT = 64; V_SB = 68; RING = 72
    W = 4; S = 2; R = 4

    def __init__(self, NTS=56, pol="nt", mapmode=4, stamp=False, ldsmin=98304, nopool=False, dbgstamp=False):
        self.dbgstamp = dbgstamp
        self.NTS, self.pol, self.mapmode, self.stamp, self.nopool = NTS, pol, mapmode, stamp, nopool
        assert NTS % self.R == 0
        self.PU = (64 - NTS) * 4 // 2
        self.NU = 2 * self.PU
        self.SC_BYTES = self.W * NTS * 128
        self.EP = self.SC_BYTES
        self.lds = max(self.EP + self.W * 1024 + self.W * 16, ldsmin)
        self.lines = []

    def e(self, s): self.lines.append(s)
    def slot(self, j): return self.RING + 16 * j
    def nvgpr(self): return max(self.RING + 16 * self.R, 76 + 6 * self.W + 2)

    def ld_k(self, j, srd, soff):
        k = self.slot(j)
        for r in range(4):
            self.e("  buffer_load_dwordx4 v[%d:%d], v%d, %s, %s offen offset:%d %s" %
                   (k + 4 * r, k + 4 * r + 3, self.V_KOFF, srd, soff, r * 1024, self.pol))
    def ld_v(self, j, srd, soff):
        v = self.slot(j)
        for r in range(4):
            self.e("  buffer_load_dwordx4 v[%d:%d], v%d, %s, %s offen offset:%d %s" %
                   (v + 4 * r, v + 4 * r + 3, self.V_VOFF, srd, soff, r * 1024, self.pol))
    def next_static(self):
        self.e("  s_lshl_b32 s68, s70, 14")
        self.e("  s_add_u32 s70, s70, 1")

    def qk(self, j):
        k, q, d = self.slot(j), self.V_Q, self.V_D
        for r in range(4):
            self.e("  v_mfma_f32_16x16x32_bf16 v[%d:%d], v[%d:%d], v[%d:%d], 0" %
                   (d + 4 * r, d + 4 * r + 3, k + 4 * r, k + 4 * r + 3, q, q + 3))
    def reduce_dpp(self, d, dst):
        self.e("  v_mul_f32_dpp v%d, v%d, v%d quad_perm:[0,0,0,0] row_mask:0xf bank_mask:0xf" % (dst, d, self.V_C))
        for s in range(1, 4):
            self.e("  v_fmac_f32_dpp v%d, v%d, v%d quad_perm:[%d,%d,%d,%d] row_mask:0xf bank_mask:0xf" %
                   (dst, d + s, self.V_C, s, s, s, s))
    def softmax_p(self, x, sub_m):
        p, b, mk, l = self.V_P, self.V_B, self.V_MASK, self.V_L
        for r in range(4):
            if sub_m: self.e("  v_sub_f32 v%d, v%d, v%d" % (p + r, x + r, self.V_M))
            else:     self.e("  v_add_f32 v%d, v%d, v%d" % (p + r, x + r, self.V_NM))
        for r in range(4): self.e("  v_exp_f32 v%d, v%d" % (p + r, p + r))
        self.e("  s_nop 0")
        for r in range(4): self.e("  v_add_f32 v%d, v%d, v%d" % (l, l, p + r))
        for r in range(4): self.e("  v_cvt_pk_bf16_f32 v%d, v%d, v%d" % (p + r, p + r, p + r))
        for r in range(4):
            for rr in range(4):
                self.e("  v_and_b32 v%d, v%d, v%d" % (b + 4 * r + rr, p + r, mk + rr))
    def pv(self, j):
        v, b, o = self.slot(j), self.V_B, self.V_O
        for r in range(4):
            self.e("  v_mfma_f32_16x16x32_bf16 v[%d:%d], v[%d:%d], v[%d:%d], v[%d:%d]" %
                   (o, o + 3, v + 4 * r, v + 4 * r + 3, b + 4 * r, b + 4 * r + 3, o, o + 3))

    def ktile(self, j, nxt):
        s = self.V_SA if j % 2 == 0 else self.V_SB
        tm = self.V_TM
        self.e("  s_waitcnt vmcnt(12)")
        self.qk(j)
        self.next_static()
        if nxt == 'k': self.ld_k(j, "s[24:27]", "s68")
        else: self.ld_v(j, "s[28:31]", "s68")
        self.e("  s_nop 1")
        for r in range(4): self.reduce_dpp(self.V_D + 4 * r, s + r)
        self.e("  s_nop 0")
        self.e("  v_max3_f32 v%d, v%d, v%d, v%d" % (tm, s, s + 1, tm))
        self.e("  v_max3_f32 v%d, v%d, v%d, v%d" % (tm, s + 2, s + 3, tm))
        self.e("  ds_write_b128 v%d, v[%d:%d] offset:%d" % (self.V_LA, s, s + 3, j * 128))

    def vtile_head(self, j, last):
        s = self.V_SA if j % 2 == 0 else self.V_SB
        sn = self.V_SB if j % 2 == 0 else self.V_SA
        if not last:
            self.e("  ds_read_b128 v[%d:%d], v%d offset:%d" % (sn, sn + 3, self.V_LA, (j + 1) * 128))
            self.e("  s_waitcnt lgkmcnt(1)")
        else:
            self.e("  s_waitcnt lgkmcnt(0)")
        self.softmax_p(s, False)

    def claim_atomic(self):
        self.e("  s_mov_b64 exec, 1")
        self.e("  global_atomic_add v%d, v%d, v%d, s[86:87] sc0" % (self.V_CL, self.V_ZERO, self.V_ONE))
        self.e("  s_mov_b64 exec, -1")

    def read_claim(self):
        e = self.e
        e("  v_readfirstlane_b32 s82, v%d" % self.V_CL)
        e("  s_nop 3")
        e("  s_or_b32 s82, s82, s85")
        e("  s_cmp_ge_u32 s82, %d" % self.PU)
        e("  s_cselect_b32 s83, %d, 0" % ((1 << 20) - self.PU * 8192))
        e("  s_lshl_b32 s84, s82, 13")
        e("  s_add_u32 s83, s83, s84")
        e("  s_add_u32 s83, s83, %d" % (self.NTS * 16384))
        e("  s_cmp_lt_u32 s82, %d" % self.NU)
        e("  s_cselect_b32 s83, s83, 0x7ff00000")
        e("  s_add_u32 s84, s83, 4096")

    def rescale(self, label, back):
        m, l, tm, t1, o = self.V_M, self.V_L, self.V_TM, self.V_T1, self.V_O
        e = self.e
        e("%s:" % label)
        e("  v_mov_b32 v%d, v%d" % (t1, tm))
        e("  s_nop 1")
        e("  v_permlane16_swap_b32 v%d, v%d" % (tm, t1))
        e("  s_nop 1")
        e("  v_max_f32 v%d, v%d, v%d" % (tm, tm, t1))
        e("  v_mov_b32 v%d, v%d" % (t1, tm))
        e("  s_nop 1")
        e("  v_permlane32_swap_b32 v%d, v%d" % (tm, t1))
        e("  s_nop 1")
        e("  v_max_f32 v%d, v%d, v%d" % (tm, tm, t1))
        e("  v_max_f32 v%d, v%d, v%d" % (tm, tm, m))
        e("  v_sub_f32 v%d, v%d, v%d" % (t1, m, tm))
        e("  v_exp_f32 v%d, v%d" % (t1, t1))
        e("  v_mov_b32 v%d, v%d" % (m, tm))
        e("  s_nop 0")
        e("  v_mul_f32 v%d, v%d, v%d" % (l, l, t1))
        for r in range(4): e("  v_mul_f32 v%d, v%d, v%d" % (o + r, o + r, t1))
        e("  s_branch %s" % back)

    def tile3(self, jk, jv, wk, wv, offreg, uid, pre=None):
        x, tm = self.V_SA, self.V_TM
        e = self.e
        e("  s_waitcnt vmcnt(%d)" % wk)
        if pre: pre()
        self.qk(jk)
        self.ld_k(jk, "s[72:75]", offreg)
        e("  s_nop 3")
        for r in range(4): self.reduce_dpp(self.V_D + 4 * r, x + r)
        e("  s_nop 0")
        e("  v_max3_f32 v%d, v%d, v%d, v%d" % (tm, x, x + 1, x + 2))
        e("  v_max_f32 v%d, v%d, v%d" % (tm, tm, x + 3))
        e("  v_cmp_gt_f32 vcc, v%d, v%d" % (tm, self.V_M))
        e("  s_cbranch_vccnz L_resc_%s" % uid)
        e("L_back_%s:" % uid)
        self.softmax_p(x, True)
        e("  s_waitcnt vmcnt(%d)" % wv)
        self.pv(jv)
        self.ld_v(jv, "s[76:79]", offreg)

    def build(self):
        S, W, R, NTS = self.S, self.W, self.R, self.NTS
        e = self.e
        lane = self.V_LANE
        e(HEADER.rstrip("\n"))
        e("; @launch grid=(256,1,1) block=(256,1,1) lds=%d" % self.lds)
        e('.amdgcn_target "amdgcn-amd-amdhsa--gfx950"')
        e(".text")
        e(".globl %s_kernel" % NAME)
        e(".p2align 8")
        e(".type %s_kernel,@function" % NAME)
        e("%s_kernel:" % NAME)
        e("  s_cmp_ge_u32 s2, 256")
        e("  s_cbranch_scc1 L_exit")
        if self.stamp or self.dbgstamp: e("  s_memrealtime s[44:45]")
        e("  s_load_dwordx16 s[4:19], s[0:1], 0")
        e("  s_load_dwordx2 s[20:21], s[0:1], 64")
        e("  v_and_b32 v%d, 63, v0" % lane)
        e("  v_lshrrev_b32 v3, 6, v0")
        e("  s_nop 0")
        e("  v_readfirstlane_b32 s3, v3")
        if self.mapmode == 0:
            e("  s_and_b32 s22, s2, 127"); e("  s_lshr_b32 s23, s2, 7")
        elif self.mapmode == 1:
            e("  s_lshr_b32 s22, s2, 1"); e("  s_and_b32 s23, s2, 1")
        elif self.mapmode == 4:
            e("  s_and_b32 s22, s2, 7"); e("  s_lshl_b32 s22, s22, 2")
            e("  s_lshr_b32 s23, 0x57641320, s22")
            e("  s_and_b32 s36, s23, 7")
            e("  s_and_b32 s23, s36, 1")
            e("  s_lshr_b32 s36, s36, 1")
            e("  s_lshr_b32 s22, s2, 3"); e("  s_lshl_b32 s22, s22, 2")
            e("  s_add_u32 s22, s22, s36")
        elif self.mapmode >= 5:
            e("  s_and_b32 s22, s2, 7"); e("  s_lshl_b32 s22, s22, 2")
            e("  s_lshr_b32 s23, 0x57641320, s22")
            e("  s_and_b32 s36, s23, 7")
            e("  s_and_b32 s23, s36, 1             ; s")
            e("  s_lshr_b32 s36, s36, 1            ; k")
            e("  s_lshr_b32 s37, s2, 3             ; j")
            kx, sx = {5: (0, 2), 6: (3, 0), 7: (None, 0), 8: (None, 4), 9: (1, 0)}[self.mapmode]
            if kx is not None:
                e("  s_lshr_b32 s39, s37, %d" % kx); e("  s_and_b32 s39, s39, 3"); e("  s_xor_b32 s36, s36, s39")
            e("  s_lshr_b32 s39, s37, %d" % sx); e("  s_and_b32 s39, s39, 1"); e("  s_xor_b32 s23, s23, s39")
            e("  s_lshl_b32 s22, s37, 2")
            e("  s_add_u32 s22, s22, s36")
        e("  v_lshrrev_b32 v60, 4, v%d            ; g" % lane)
        e("  v_and_b32 v61, 15, v%d               ; i / n" % lane)
        e("  v_lshlrev_b32 v%d, 4, v%d" % (self.V_VOFF, lane))
        e("  v_lshrrev_b32 v62, 2, v61")
        e("  v_lshlrev_b32 v62, 8, v62           ; kk*256")
        e("  v_and_b32 v63, 3, v61               ; s")
        e("  v_lshlrev_b32 v63, 4, v63           ; s*16")
        e("  v_lshl_add_u32 v63, v60, 6, v63     ; g*64 + s*16")
        e("  v_add_u32 v%d, v62, v63" % self.V_KOFF)
        e("  v_lshrrev_b32 v62, 3, v61")
        e("  v_lshlrev_b32 v62, 8, v62")
        e("  v_add_u32 v3, v62, v63              ; Q voffset")
        e("  v_lshrrev_b32 v62, 3, v61           ; h")
        e("  v_lshl_add_u32 v62, v60, 1, v62     ; g*2+h")
        e("  v_lshlrev_b32 v62, 4, v62")
        e("  s_mul_i32 s36, s3, %d" % (NTS * 128))
        e("  v_add_u32 v%d, s36, v62" % self.V_LA)
        e("  v_and_b32 v62, 1, v61")
        e("  v_cmp_eq_u32 vcc, 1, v62")
        e("  v_mov_b32 v62, 0xffff")
        e("  v_mov_b32 v63, 0xffff0000")
        e("  v_cndmask_b32 v62, v62, v63, vcc")
        e("  v_bfe_u32 v63, v61, 1, 2             ; (n&7)>>1")
        for rr in range(4):
            e("  v_cmp_eq_u32 vcc, %d, v63" % rr)
            e("  s_nop 1")
            e("  v_cndmask_b32 v%d, 0, v62, vcc" % (self.V_MASK + rr))
        e("  s_mov_b32 s34, %s" % hexf(C_SCALE))
        e("  v_mov_b32 v%d, 0xff800000" % self.V_TM)
        e("  v_mov_b32 v%d, 0xff800000" % self.V_ST)
        e("  v_mov_b32 v%d, 1" % self.V_ONE)
        e("  v_mov_b32 v%d, 0" % self.V_ZERO)
        e("  v_mov_b32 v%d, 0xff" % self.V_CL)
        for r in range(4): e("  v_mov_b32 v%d, 0" % (self.V_VT + r))
        e("  s_waitcnt lgkmcnt(0)")
        if self.dbgstamp: e("  s_memrealtime s[46:47]")
        e("  s_lshl_b32 s36, s22, 9")
        e("  s_add_u32 s4, s4, s36")
        e("  s_addc_u32 s5, s5, 0")
        e("  global_load_dwordx4 v[%d:%d], v3, s[4:5]" % (self.V_Q, self.V_Q + 3))
        e("  s_lshl_b32 s36, s22, 21")
        e("  s_add_u32 s72, s6, s36")
        e("  s_addc_u32 s73, s7, 0")
        e("  s_and_b32 s73, s73, 0xffff")
        e("  s_mov_b32 s74, 0x200000")
        e("  s_mov_b32 s75, 0x20000")
        e("  s_add_u32 s76, s8, s36")
        e("  s_addc_u32 s77, s9, 0")
        e("  s_and_b32 s77, s77, 0xffff")
        e("  s_mov_b32 s78, 0x200000")
        e("  s_mov_b32 s79, 0x20000")
        e("  s_lshl_b32 s37, s23, 20")
        e("  s_add_u32 s36, s36, s37")
        e("  s_lshl_b32 s37, s3, 12")
        e("  s_add_u32 s36, s36, s37")
        e("  s_add_u32 s24, s6, s36")
        e("  s_addc_u32 s25, s7, 0")
        e("  s_and_b32 s25, s25, 0xffff")
        e("  s_sub_u32 s26, 0x100000, s37")
        e("  s_mov_b32 s27, 0x20000")
        e("  s_add_u32 s28, s8, s36")
        e("  s_addc_u32 s29, s9, 0")
        e("  s_and_b32 s29, s29, 0xffff")
        e("  s_mov_b32 s30, s26")
        e("  s_mov_b32 s31, 0x20000")
        if self.dbgstamp:
            e("  s_lshr_b32 s40, s22, 2")
            e("  s_lshl_b32 s40, s40, 2")
            e("  s_add_u32 s40, s40, 128")
            e("  s_and_b32 s41, s22, 3")
            e("  s_lshl_b32 s41, s41, 3")
        else:
            e("  s_lshr_b32 s40, s22, 1")
            e("  s_lshl_b32 s40, s40, 2")
            e("  s_and_b32 s41, s22, 1")
            e("  s_lshl_b32 s41, s41, 4")
        e("  s_or_b32 s38, s23, s3")
        e("  s_cmp_lg_u32 s38, 0")
        e("  s_cbranch_scc1 L_notree_issue")
        e("  s_lshl_b32 s36, s22, 8              ; pair*256")
        e("  s_add_u32 s10, s10, s36")
        e("  s_addc_u32 s11, s11, 0")
        e("  s_add_u32 s12, s12, s36")
        e("  s_addc_u32 s13, s13, 0")
        e("  v_and_b32 v63, 3, v61")
        e("  v_lshlrev_b32 v63, 4, v63")
        e("  v_lshl_add_u32 v62, v60, 6, v63     ; g*64 + s*16")
        e("  global_load_dwordx4 v[%d:%d], v62, s[10:11]" % (self.V_B + 4, self.V_B + 7))
        e("  v_and_b32 v63, 7, v61")
        e("  v_lshlrev_b32 v63, 1, v63")
        e("  v_lshl_add_u32 v63, v60, 6, v63")
        for r in range(4):
            e("  global_load_ushort v%d, v63, s[12:13] offset:%d" % (self.V_VT + r, r * 16))
        e("  s_lshr_b32 s36, s22, 4")
        e("  s_lshl_b32 s37, s36, 1")
        e("  s_and_b32 s37, s37, 0xfffffffc")
        e("  s_load_dword s39, s[14:15], s37")
        e("L_notree_issue:")
        e("  s_mov_b32 s70, 0")
        for j in range(R):
            self.next_static()
            self.ld_k(j, "s[24:27]", "s68")
        e("  s_cmp_lg_u32 s38, 0")
        e("  s_cbranch_scc1 L_notree")
        e("  s_lshl_b32 s42, s22, 8")
        e("  s_add_u32 s42, s42, 0x100000")
        e("  s_add_u32 s86, s20, s42")
        e("  s_addc_u32 s87, s21, 0")
        e("  s_mov_b64 exec, 1")
        e("  global_store_dword v%d, v%d, s[86:87] sc1" % (self.V_ZERO, self.V_ZERO))
        e("  s_mov_b64 exec, -1")
        e("  s_waitcnt lgkmcnt(0)")
        e("  s_and_b32 s36, s36, 1")
        e("  s_lshl_b32 s36, s36, 4")
        e("  s_lshr_b32 s39, s39, s36")
        e("  s_lshl_b32 s39, s39, 16")
        e("  s_waitcnt vmcnt(0)")
        e("  s_lshl_b32 s42, %s, s41" % ("0x80" if self.dbgstamp else "0x8000"))
        e("  v_mov_b32 v62, s40")
        e("  v_mov_b32 v63, s42")
        e("  s_mov_b64 exec, 1")
        e("  global_atomic_add v62, v63, s[18:19]")
        e("  s_mov_b64 exec, -1")
        e("  v_mov_b32 v%d, s34" % self.V_C)
        e("  v_mfma_f32_16x16x32_bf16 v[%d:%d], v[%d:%d], v[%d:%d], 0" % (self.V_D, self.V_D + 3, self.V_B + 4, self.V_B + 7, self.V_Q, self.V_Q + 3))
        e("  s_nop 7")
        self.reduce_dpp(self.V_D, self.V_SA)
        e("  v_sub_f32 v62, 1.0, s39")
        e("  v_mul_f32 v62, %s, v62" % hexf(-1e9 * math.log2(math.e)))
        e("  v_add_f32 v%d, v%d, v62" % (self.V_ST, self.V_SA))
        for r in range(4): e("  v_lshlrev_b32 v%d, 16, v%d" % (self.V_VT + r, self.V_VT + r))
        e("L_notree:")
        e("  v_mov_b32 v%d, s34" % self.V_C)
        if self.stamp:
            e("  s_waitcnt vmcnt(12)")
            e("  s_memrealtime s[46:47]")
            e("  s_waitcnt lgkmcnt(0)")
        if self.dbgstamp:
            e("  s_waitcnt vmcnt(12)")
            e("  s_memrealtime s[48:49]")
            e("  s_waitcnt lgkmcnt(0)")
        n1 = NTS // R - 1
        e("  s_mov_b32 s33, %d" % n1)
        e("L_p1:")
        for j in range(R): self.ktile(j, 'k')
        e("  v_add_u32 v%d, %d, v%d" % (self.V_LA, R * 128, self.V_LA))
        e("  s_sub_u32 s33, s33, 1")
        e("  s_cmp_lg_u32 s33, 0")
        e("  s_cbranch_scc1 L_p1")
        e("  s_mov_b32 s70, 0")
        e("  v_mov_b32 v62, s40")
        e("  global_load_dword v%d, v62, s[18:19] sc1" % self.V_FLAG)
        for j in range(R): self.ktile(j, 'v')
        if self.stamp: e("  s_memrealtime s[58:59]")
        tm, t1, m = self.V_TM, self.V_T1, self.V_M
        e("  v_subrev_u32 v%d, %d, v%d" % (self.V_LA, (NTS - R) * 128, self.V_LA))
        e("  v_mov_b32 v%d, v%d" % (t1, tm))
        e("  s_nop 1")
        e("  v_permlane16_swap_b32 v%d, v%d" % (tm, t1))
        e("  s_nop 1")
        e("  v_max_f32 v%d, v%d, v%d" % (tm, tm, t1))
        e("  v_mov_b32 v%d, v%d" % (t1, tm))
        e("  s_nop 1")
        e("  v_permlane32_swap_b32 v%d, v%d" % (tm, t1))
        e("  s_nop 1")
        e("  v_max_f32 v%d, v%d, v%d" % (tm, tm, t1))
        e("  v_max_f32 v%d, v%d, v%d" % (m, tm, self.V_ST))
        e("  v_sub_f32 v%d, 0, v%d" % (self.V_NM, m))
        e("  v_add_f32 v%d, v%d, v%d" % (t1, self.V_ST, self.V_NM))
        e("  v_exp_f32 v%d, v%d" % (t1, t1))
        e("  v_cmp_gt_u32 vcc, 16, v%d" % lane)
        e("  s_nop 1")
        e("  v_cndmask_b32 v%d, 0, v%d, vcc" % (self.V_L, t1))
        for r in range(4): e("  v_mul_f32 v%d, v%d, v%d" % (self.V_O + r, t1, self.V_VT + r))
        e("  s_waitcnt vmcnt(16)")
        e("  v_readfirstlane_b32 s80, v%d" % self.V_FLAG)
        e("  s_nop 3")
        e("  s_lshr_b32 s80, s80, s41")
        e("  s_and_b32 s80, s80, %s" % ("0x80" if self.dbgstamp else "0x8000"))
        if self.nopool: e("  s_mov_b32 s80, 0")
        e("  s_cmp_eq_u32 s38, 0")
        e("  s_cselect_b32 s80, 0x8000, s80")
        e("  s_lshl_b32 s42, s22, 8")
        e("  s_add_u32 s42, s42, 0x100000")
        e("  s_lshl_b32 s43, s2, 2")
        e("  s_add_u32 s43, s43, s3")
        e("  s_lshl_b32 s43, s43, 8")
        e("  s_add_u32 s43, s43, 0x200000")
        e("  s_cmp_lg_u32 s80, 0")
        e("  s_cselect_b32 s42, s42, s43")
        e("  s_cselect_b32 s85, 0, 0xff")
        e("  s_add_u32 s86, s20, s42")
        e("  s_addc_u32 s87, s21, 0")
        e("  s_waitcnt lgkmcnt(0)")
        e("  ds_read_b128 v[%d:%d], v%d" % (self.V_SA, self.V_SA + 3, self.V_LA))
        e("  s_mov_b32 s33, %d" % n1)
        e("L_p2:")
        e("  s_cmp_lg_u32 s33, 1")
        e("  s_cbranch_scc1 L_p2_noclaim")
        self.claim_atomic()
        e("L_p2_noclaim:")
        for j in range(R):
            self.vtile_head(j, False)
            e("  s_waitcnt vmcnt(12)")
            self.pv(j)
            self.next_static()
            self.ld_v(j, "s[28:31]", "s68")
        e("  v_add_u32 v%d, %d, v%d" % (self.V_LA, R * 128, self.V_LA))
        e("  s_sub_u32 s33, s33, 1")
        e("  s_cmp_lg_u32 s33, 0")
        e("  s_cbranch_scc1 L_p2")
        for j in range(R):
            self.vtile_head(j, j == R - 1)
            e("  s_waitcnt vmcnt(%d)" % (12 if j == 0 else 13))
            if j == 0:
                self.read_claim()
                self.claim_atomic()
            self.pv(j)
            off = "s83" if j < 2 else "s84"
            if j % 2 == 0: self.ld_k(j, "s[72:75]", off)
            else: self.ld_v(j, "s[76:79]", off)
        if self.stamp: e("  s_memrealtime s[90:91]")
        e("  s_mov_b32 s88, 0")
        e("  s_cmp_ge_u32 s82, %d" % self.NU)
        e("  s_cbranch_scc1 L_p3_done")
        e("L_p3:")
        e("  s_add_u32 s88, s88, 1")
        def pre():
            self.read_claim()
            self.claim_atomic()
        self.tile3(0, 1, 12, 13, "s83", "a", pre)
        self.tile3(2, 3, 13, 13, "s84", "b")
        e("  s_cmp_lt_u32 s82, %d" % self.NU)
        e("  s_cbranch_scc1 L_p3")
        e("L_p3_done:")
        if self.dbgstamp:
            e("  s_memrealtime s[50:51]")
            e("  s_waitcnt lgkmcnt(0)")
        if self.stamp:
            e("  s_memrealtime s[48:49]")
            e("  s_waitcnt lgkmcnt(0)")
            self.store_stamps(False)
        l = self.V_L
        e("  v_mov_b32 v%d, v%d" % (t1, l))
        e("  s_nop 1")
        e("  v_permlane16_swap_b32 v%d, v%d" % (l, t1))
        e("  s_nop 1")
        e("  v_add_f32 v%d, v%d, v%d" % (l, l, t1))
        e("  v_mov_b32 v%d, v%d" % (t1, l))
        e("  s_nop 1")
        e("  v_permlane32_swap_b32 v%d, v%d" % (l, t1))
        e("  s_nop 1")
        e("  v_add_f32 v%d, v%d, v%d" % (l, l, t1))
        e("  v_lshrrev_b32 v60, 4, v%d" % lane)
        e("  v_and_b32 v61, 15, v%d" % lane)
        e("  v_lshrrev_b32 v62, 3, v61")
        e("  v_lshlrev_b32 v62, 9, v62")
        e("  v_lshl_add_u32 v62, v60, 7, v62")
        e("  v_and_b32 v63, 7, v61")
        e("  v_lshl_add_u32 v62, v63, 2, v62")
        e("  s_lshl_b32 s36, s3, 10")
        e("  s_add_u32 s36, s36, %d" % self.EP)
        e("  v_add_u32 v62, s36, v62")
        for r in range(4): e("  ds_write_b32 v62, v%d offset:%d" % (self.V_O + r, r * 32))
        e("  v_lshrrev_b32 v63, 3, v61")
        e("  v_lshlrev_b32 v63, 3, v63")
        e("  s_lshl_b32 s36, s3, 4")
        e("  s_add_u32 s36, s36, %d" % (self.EP + W * 1024))
        e("  v_add_u32 v63, s36, v63")
        e("  v_mov_b32 v60, v%d" % m)
        e("  v_mov_b32 v61, v%d" % l)
        e("  ds_write_b64 v63, v[60:61]")
        e("  s_waitcnt vmcnt(0) lgkmcnt(0)")
        e("  s_barrier")
        e("  s_cmp_lg_u32 s3, 0")
        e("  s_cbranch_scc1 L_end")
        if self.stamp: e("  s_memrealtime s[60:61]")
        e("  v_lshlrev_b32 v1, 4, v%d             ; lane*16" % lane)
        e("  v_lshrrev_b32 v2, 5, v%d" % lane)
        e("  v_lshlrev_b32 v2, 3, v2              ; h*8")
        e("  v_add_u32 v2, %d, v2" % (self.EP + W * 1024))
        e("  v_add_u32 v3, %d, v1" % self.EP)
        OB, MB = 76, 76 + 4 * W
        for w in range(W): e("  ds_read_b64 v[%d:%d], v2 offset:%d" % (MB + 2 * w, MB + 2 * w + 1, w * 16))
        for w in range(W): e("  ds_read_b128 v[%d:%d], v3 offset:%d" % (OB + 4 * w, OB + 4 * w + 3, w * 1024))
        e("  s_waitcnt lgkmcnt(0)")
        self.merge(W, OB, MB, 4, 8)
        e("  s_lshl_b32 s36, s22, 1")
        e("  s_add_u32 s36, s36, s23")
        e("  s_lshl_b32 s36, s36, 11")
        e("  s_add_u32 s92, s20, s36")
        e("  s_addc_u32 s93, s21, 0")
        e("  v_mov_b32 v10, 0")
        e("  v_mov_b32 v11, 0")
        e("  global_store_dwordx4 v1, v[4:7], s[92:93] sc1")
        e("  global_store_dwordx4 v1, v[8:11], s[92:93] offset:1024 sc1")
        e("  s_waitcnt vmcnt(0)")
        if self.stamp: e("  s_memrealtime s[62:63]")
        e("  s_lshl_b32 s42, 1, s41")
        e("  v_mov_b32 v12, s40")
        e("  v_mov_b32 v13, s42")
        e("  s_mov_b64 exec, 1")
        e("  global_atomic_add v14, v12, v13, s[18:19] sc0")
        e("  s_waitcnt vmcnt(0)")
        if self.stamp: e("  s_memrealtime s[64:65]")
        e("  v_readfirstlane_b32 s43, v14")
        e("  s_mov_b64 exec, -1")
        e("  s_nop 3")
        e("  s_lshr_b32 s43, s43, s41")
        e("  s_and_b32 s43, s43, 0x7f")
        e("  s_cmp_lg_u32 s43, %d" % (S - 1))
        e("  s_cbranch_scc1 L_end")
        self.final_combine("sc1")
        e("L_end:")
        if self.dbgstamp:
            e("  s_waitcnt vmcnt(0)")
            e("  s_memrealtime s[52:53]")
            e("  s_waitcnt lgkmcnt(0)")
            e("  s_mov_b64 exec, 1")
            vals = [("s52", False), ("s44", True), ("s44", False), ("s46", False), ("s48", False), ("s48", True), ("s50", False), ("s50", True)]
            for i, (sr, inv) in enumerate(vals):
                if inv:
                    e("  s_not_b32 s54, %s" % sr)
                    e("  v_mov_b32 v61, s54")
                else:
                    e("  v_mov_b32 v61, %s" % sr)
                e("  v_mov_b32 v60, %d" % (4 * i))
                e("  global_atomic_umax v60, v61, s[18:19]")
                e("  s_nop 2")
        if self.stamp:
            e("  s_cmp_lg_u32 s3, 0")
            e("  s_cbranch_scc1 L_exit")
            e("  s_waitcnt vmcnt(0)")
            e("  s_memrealtime s[50:51]")
            e("  s_waitcnt lgkmcnt(0)")
            self.store_stamps(True)
        e("L_exit:")
        e("  s_endpgm")
        self.rescale("L_resc_a", "L_back_a")
        self.rescale("L_resc_b", "L_back_b")
        e('.section .rodata,"a"')
        e(".p2align 6")
        e(".amdhsa_kernel %s_kernel" % NAME)
        nv = self.nvgpr()
        e("  .amdhsa_next_free_vgpr %d" % nv)
        e("  .amdhsa_next_free_sgpr 96")
        e("  .amdhsa_accum_offset %d" % ((nv + 3) // 4 * 4))
        e("  .amdhsa_group_segment_fixed_size 0")
        e("  .amdhsa_kernarg_size 72")
        e("  .amdhsa_user_sgpr_count 2")
        e("  .amdhsa_user_sgpr_kernarg_segment_ptr 1")
        e("  .amdhsa_system_sgpr_workgroup_id_x 1")
        e(".end_amdhsa_kernel")
        return "\n".join(self.lines) + "\n"

    def store_stamps(self, final):
        e = self.e
        e("  s_mul_i32 s52, s2, %d" % self.W)
        e("  s_add_u32 s52, s52, s3")
        e("  s_lshl_b32 s52, s52, 6")
        e("  s_add_u32 s52, s52, 0x20000000")
        e("  s_add_u32 s54, s20, s52")
        e("  s_addc_u32 s55, s21, 0")
        if not final:
            e("  v_mov_b32 v60, s44"); e("  v_mov_b32 v61, s46"); e("  v_mov_b32 v62, s48"); e("  v_mov_b32 v63, s2")
            e("  v_mov_b32 v3, 0")
            e("  global_store_dwordx4 v3, v[60:63], s[54:55]")
            e("  v_mov_b32 v64, s58"); e("  v_mov_b32 v65, s90"); e("  v_mov_b32 v66, s88"); e("  v_mov_b32 v67, 0")
            e("  global_store_dwordx4 v3, v[64:67], s[54:55] offset:48")
            for r in range(60, 68): e("  s_mov_b32 s%d, 0" % r)
            e("  s_nop 4")
        else:
            e("  v_mov_b32 v60, s50")
            e("  s_getreg_b32 s56, hwreg(HW_REG_XCC_ID)")
            e("  s_getreg_b32 s57, hwreg(HW_REG_HW_ID)")
            e("  v_mov_b32 v61, s56"); e("  v_mov_b32 v62, s57"); e("  v_mov_b32 v63, 0"); e("  v_mov_b32 v3, 0")
            e("  global_store_dwordx4 v3, v[60:63], s[54:55] offset:16")
            e("  v_mov_b32 v64, s60"); e("  v_mov_b32 v65, s62"); e("  v_mov_b32 v66, s64"); e("  v_mov_b32 v67, s66")
            e("  global_store_dwordx4 v3, v[64:67], s[54:55] offset:32")

    def merge(self, n, OB, MB, OD, MD):
        e = self.e
        e("  v_mov_b32 v%d, v%d" % (MD, MB))
        for w in range(1, n): e("  v_max_f32 v%d, v%d, v%d" % (MD, MD, MB + 2 * w))
        for w in range(n): e("  v_sub_f32 v%d, v%d, v%d" % (MB + 2 * w, MB + 2 * w, MD))
        for w in range(n): e("  v_exp_f32 v%d, v%d" % (MB + 2 * w, MB + 2 * w))
        e("  s_nop 0")
        e("  v_mul_f32 v%d, v%d, v%d" % (MD + 1, MB, MB + 1))
        for w in range(1, n): e("  v_fmac_f32 v%d, v%d, v%d" % (MD + 1, MB + 2 * w, MB + 2 * w + 1))
        for r in range(4): e("  v_mul_f32 v%d, v%d, v%d" % (OD + r, MB, OB + r))
        for w in range(1, n):
            for r in range(4): e("  v_fmac_f32 v%d, v%d, v%d" % (OD + r, MB + 2 * w, OB + 4 * w + r))

    def final_combine(self, pol):
        e = self.e; S = self.S
        e("  s_lshl_b32 s36, s22, 12")
        e("  s_add_u32 s92, s20, s36")
        e("  s_addc_u32 s93, s21, 0")
        OB = 76; MB = 76 + 4 * S
        for s in range(S):
            off = s * 2048
            e("  global_load_dwordx4 v[%d:%d], v1, s[92:93] offset:%d %s" % (OB + 4 * s, OB + 4 * s + 3, off, pol))
            e("  global_load_dwordx2 v[%d:%d], v1, s[92:93] offset:%d %s" % (MB + 2 * s, MB + 2 * s + 1, off + 1024, pol))
        e("  s_waitcnt vmcnt(0)")
        if self.stamp: e("  s_memrealtime s[66:67]")
        self.merge(S, OB, MB, 4, 8)
        e("  v_rcp_f32 v9, v9")
        e("  s_nop 0")
        for r in range(4): e("  v_mul_f32 v%d, v%d, v9" % (4 + r, 4 + r))
        e("  v_cvt_pk_bf16_f32 v4, v4, v5")
        e("  v_cvt_pk_bf16_f32 v5, v6, v7")
        e("  s_lshl_b32 s36, s22, 9")
        e("  s_add_u32 s16, s16, s36")
        e("  s_addc_u32 s17, s17, 0")
        e("  v_lshrrev_b32 v2, 1, v1             ; lane*8")
        e("  global_store_dwordx2 v2, v[4:5], s[16:17]")

if __name__ == "__main__":
    ap = argparse.ArgumentParser()
    ap.add_argument("-o", default="cdna_kernels/%s.s" % NAME)
    ap.add_argument("--nts", type=int, default=56)
    ap.add_argument("--pol", default="nt")
    ap.add_argument("--map", type=int, default=4)
    ap.add_argument("--stamp", action="store_true")
    ap.add_argument("--ldsmin", type=int, default=98304)
    ap.add_argument("--nopool", action="store_true")
    ap.add_argument("--dbgstamp", action="store_true")
    a = ap.parse_args()
    g = Gen3(NTS=a.nts, pol=a.pol, mapmode=a.map, stamp=a.stamp, ldsmin=a.ldsmin, nopool=a.nopool, dbgstamp=a.dbgstamp)
    open(a.o, "w").write(g.build())
    print("wrote", a.o, "vgprs", g.nvgpr(), "lds", g.lds, "NU", g.NU)
```

```python
import struct, sys, math, argparse
sys.path.insert(0, "gen")
from gen import NAME, HEADER, f32bits, hexf, C_SCALE, parse_amap

class Gen2:
    V_KOFF, V_VOFF = 1, 2
    V_Q = 4; V_MASK = 20; V_O = 24; V_SA = 28; V_P = 32; V_B = 36
    V_M, V_NMC, V_L, V_TM, V_T1, V_ST, V_LA, V_LANE = 52, 53, 54, 55, 56, 57, 58, 59
    V_VT = 64; V_SB = 68; V_VR = 72; RING = 76
    V_D = 36
    V_C = 60

    def __init__(self, S=2, W=4, R=8, pol="nt", mapmode=0, stamp=False, ldsmin=98304, amap=None, kmode=1, kpol=None, wv=63, fine=0):
        self.fine = fine
        self.wv = wv
        self.kmode = kmode
        self.kpol = pol if kpol is None else kpol
        self.S, self.W, self.R, self.pol, self.mapmode, self.stamp = S, W, R, pol, mapmode, stamp
        self.NWG = 128 * S
        self.KEYS_WG = 8192 // S
        self.WGBYTES = self.KEYS_WG * 256
        self.NT = self.KEYS_WG // 16 // W
        assert self.NT % R == 0 and R % 2 == 0
        lw = int(math.log2(W))
        if amap is None:
            amap = dict(gs=1024, ws=4096, fields=[(0, int(math.log2(self.NT)), 12 + lw)])
        self.amap = amap
        self.SC_BYTES = W * self.NT * 128
        self.EP = self.SC_BYTES
        self.lds = max(self.EP + W * 1024 + W * 16, ldsmin)
        self.lines = []

    def e(self, s): self.lines.append(s)
    def slot(self, j): return self.RING + 16 * j
    def nvgpr(self): return max(self.RING + 16 * self.R, 76 + 6 * self.W + 2, 76 + 6 * self.S + 4)

    def calc_off(self):
        first = True
        for (lo, n, pos) in self.amap["fields"]:
            dst = "s68" if first else "s71"
            self.e("  s_bfe_u32 %s, s70, 0x%x" % (dst, (n << 16) | lo))
            if pos: self.e("  s_lshl_b32 %s, %s, %d" % (dst, dst, pos))
            if not first: self.e("  s_or_b32 s68, s68, s71")
            first = False
        self.e("  s_add_u32 s70, s70, 1")

    def issue_k(self, j):
        k = self.slot(j)
        gs = self.amap["gs"]
        for t in range(4):
            if self.kmode == 1:
                self.e("  buffer_load_dwordx4 v[%d:%d], v%d, s[24:27], s68 offen offset:%d %s" %
                   (k + 4 * t, k + 4 * t + 3, self.V_KOFF, t * 64, self.kpol))
            else:
                assert gs * 3 <= 3072
                self.e("  buffer_load_dwordx4 v[%d:%d], v%d, s[24:27], s68 offen offset:%d %s" %
                   (k + 4 * t, k + 4 * t + 3, self.V_KOFF, t * gs, self.kpol))

    def issue_v(self, j):
        v = self.slot(j); gs = self.amap["gs"]
        for r in range(4):
            if gs * 3 <= 3072:
                self.e("  buffer_load_dwordx4 v[%d:%d], v%d, s[28:31], s68 offen offset:%d %s" %
                       (v + 4 * r, v + 4 * r + 3, self.V_VOFF, r * gs, self.pol))
            else:
                self.e("  buffer_load_dwordx4 v[%d:%d], v%d, s[28:31], s68 offen %s" %
                       (v + 4 * r, v + 4 * r + 3, self.V_VR + r, self.pol))

    def issue_k1(self, j, r):
        k = self.slot(j); gs = self.amap["gs"]
        self.e("  buffer_load_dwordx4 v[%d:%d], v%d, s[24:27], s68 offen offset:%d %s" %
               (k + 4 * r, k + 4 * r + 3, self.V_KOFF, r * gs, self.kpol))
    def issue_v1(self, j, r):
        v = self.slot(j); gs = self.amap["gs"]
        self.e("  buffer_load_dwordx4 v[%d:%d], v%d, s[28:31], s68 offen offset:%d %s" %
               (v + 4 * r, v + 4 * r + 3, self.V_VOFF, r * gs, self.pol))

    def qk(self, k, s):
        q = self.V_Q
        for t in range(4):
            c = "0" if t == 0 else "v[%d:%d]" % (s, s + 3)
            self.e("  v_mfma_f32_16x16x32_bf16 v[%d:%d], v[%d:%d], v[%d:%d], %s" %
                   (s, s + 3, k + 4 * t, k + 4 * t + 3, q + 4 * t, q + 4 * t + 3, c))

    def ktile(self, j, nxt):
        R = self.R
        s = self.V_SA if j % 2 == 0 else self.V_SB
        tm = self.V_TM
        if self.fine:
            assert self.kmode == 2
            k = self.slot(j); q = self.V_Q; d = self.V_D
            self.calc_off()
            for r in range(4):
                self.e("  s_waitcnt vmcnt(%d)" % min(self.fine - 1, 4 * R - 1))
                self.e("  v_mfma_f32_16x16x32_bf16 v[%d:%d], v[%d:%d], v[%d:%d], 0" %
                       (d + 4 * r, d + 4 * r + 3, k + 4 * r, k + 4 * r + 3, q, q + 3))
                if nxt == 'k': self.issue_k1(j, r)
                else: self.issue_v1(j, r)
            self.e("  s_nop 0")
            for r in range(4):
                if r == 3: self.e("  s_nop 0")
                self.reduce_dpp(self.V_D + 4 * r, s + r)
            self.e("  s_nop 0")
            self.e("  v_max3_f32 v%d, v%d, v%d, v%d" % (tm, s, s + 1, tm))
            self.e("  v_max3_f32 v%d, v%d, v%d, v%d" % (tm, s + 2, s + 3, tm))
            self.e("  ds_write_b128 v%d, v[%d:%d] offset:%d" % (self.V_LA, s, s + 3, j * 128))
            return
        self.e("  s_waitcnt vmcnt(%d)" % min(self.wv, 4 * (R - 1)))
        if self.kmode == 1:
            self.qk(self.slot(j), s)
        else:
            k = self.slot(j); q = self.V_Q; d = self.V_D
            for r in range(4):
                self.e("  v_mfma_f32_16x16x32_bf16 v[%d:%d], v[%d:%d], v[%d:%d], 0" %
                       (d + 4 * r, d + 4 * r + 3, k + 4 * r, k + 4 * r + 3, q, q + 3))
        self.calc_off()
        if nxt == 'k': self.issue_k(j)
        else: self.issue_v(j)
        self.e("  s_nop 1")
        if self.kmode == 2:
            for r in range(4):
                self.reduce_dpp(self.V_D + 4 * r, s + r)
            self.e("  s_nop 0")
        self.e("  v_max3_f32 v%d, v%d, v%d, v%d" % (tm, s, s + 1, tm))
        self.e("  v_max3_f32 v%d, v%d, v%d, v%d" % (tm, s + 2, s + 3, tm))
        self.e("  ds_write_b128 v%d, v[%d:%d] offset:%d" % (self.V_LA, s, s + 3, j * 128))

    def reduce_dpp(self, d, dst):
        self.e("  v_mul_f32_dpp v%d, v%d, v%d quad_perm:[0,0,0,0] row_mask:0xf bank_mask:0xf" % (dst, d, self.V_C))
        for s in range(1, 4):
            self.e("  v_fmac_f32_dpp v%d, v%d, v%d quad_perm:[%d,%d,%d,%d] row_mask:0xf bank_mask:0xf" %
                   (dst, d + s, self.V_C, s, s, s, s))

    def vtile(self, j, nxt, wait, last):
        s = self.V_SA if j % 2 == 0 else self.V_SB
        sn = self.V_SB if j % 2 == 0 else self.V_SA
        p, b, o, mk, l, nmc = self.V_P, self.V_B, self.V_O, self.V_MASK, self.V_L, self.V_NMC
        v = self.slot(j)
        if not last:
            self.e("  ds_read_b128 v[%d:%d], v%d offset:%d" % (sn, sn + 3, self.V_LA, (j + 1) * 128))
            self.e("  s_waitcnt lgkmcnt(1)")
        else:
            self.e("  s_waitcnt lgkmcnt(0)")
        for r in range(4):
            if self.kmode == 1:
                self.e("  v_fma_f32 v%d, v%d, s34, v%d" % (p + r, s + r, nmc))
            else:
                self.e("  v_add_f32 v%d, v%d, v%d" % (p + r, s + r, nmc))
        for r in range(4):
            self.e("  v_exp_f32 v%d, v%d" % (p + r, p + r))
        self.e("  s_nop 0")
        for r in range(4):
            self.e("  v_add_f32 v%d, v%d, v%d" % (l, l, p + r))
        for r in range(4):
            self.e("  v_cvt_pk_bf16_f32 v%d, v%d, v%d" % (p + r, p + r, p + r))
        for r in range(4):
            for rr in range(4):
                self.e("  v_and_b32 v%d, v%d, v%d" % (b + 4 * r + rr, p + r, mk + rr))
        if self.fine:
            if nxt: self.calc_off()
            for r in range(4):
                w = (4 * self.R - 1) if nxt else (wait + 3 - r)
                self.e("  s_waitcnt vmcnt(%d)" % min(self.fine - 1, w))
                self.e("  v_mfma_f32_16x16x32_bf16 v[%d:%d], v[%d:%d], v[%d:%d], v[%d:%d]" %
                       (o, o + 3, v + 4 * r, v + 4 * r + 3, b + 4 * r, b + 4 * r + 3, o, o + 3))
                if nxt: self.issue_v1(j, r)
            return
        self.e("  s_waitcnt vmcnt(%d)" % min(self.wv, wait))
        for r in range(4):
            self.e("  v_mfma_f32_16x16x32_bf16 v[%d:%d], v[%d:%d], v[%d:%d], v[%d:%d]" %
                   (o, o + 3, v + 4 * r, v + 4 * r + 3, b + 4 * r, b + 4 * r + 3, o, o + 3))
        if nxt:
            self.calc_off()
            self.issue_v(j)

    def build(self):
        S, W, R, NT = self.S, self.W, self.R, self.NT
        e = self.e
        lane = self.V_LANE
        e(HEADER.rstrip("\n"))
        e("; @launch grid=(%d,1,1) block=(%d,1,1) lds=%d" % (self.NWG, 64 * W, self.lds))
        e('.amdgcn_target "amdgcn-amd-amdhsa--gfx950"')
        e(".text")
        e(".globl %s_kernel" % NAME)
        e(".p2align 8")
        e(".type %s_kernel,@function" % NAME)
        e("%s_kernel:" % NAME)
        e("  s_cmp_ge_u32 s2, %d" % self.NWG)
        e("  s_cbranch_scc1 L_exit")
        if self.stamp: e("  s_memrealtime s[44:45]")
        e("  s_load_dwordx16 s[4:19], s[0:1], 0")
        e("  s_load_dwordx2 s[20:21], s[0:1], 64")
        e("  v_and_b32 v%d, 63, v0" % lane)
        e("  v_lshrrev_b32 v3, 6, v0")
        e("  s_nop 0")
        e("  v_readfirstlane_b32 s3, v3")
        lg = int(math.log2(S))
        if self.mapmode == 0:
            e("  s_and_b32 s22, s2, 127"); e("  s_lshr_b32 s23, s2, 7")
        elif self.mapmode == 1:
            e("  s_lshr_b32 s22, s2, %d" % lg); e("  s_and_b32 s23, s2, %d" % (S - 1))
        elif self.mapmode == 2:
            e("  s_and_b32 s22, s2, 7"); e("  s_lshl_b32 s22, s22, 4")
            e("  s_lshr_b32 s23, s2, %d" % (3 + lg)); e("  s_add_u32 s22, s22, s23")
            e("  s_lshr_b32 s23, s2, 3"); e("  s_and_b32 s23, s23, %d" % (S - 1))
        elif self.mapmode == 3:
            e("  s_lshr_b32 s23, s2, %d" % (3 + lg))
            e("  s_add_u32 s22, s2, s23"); e("  s_and_b32 s22, s22, 7")
            e("  s_lshl_b32 s23, s23, 3"); e("  s_add_u32 s22, s22, s23")
            e("  s_lshr_b32 s23, s2, 3"); e("  s_and_b32 s23, s23, %d" % (S - 1))
        e("  v_lshrrev_b32 v60, 4, v%d            ; g" % lane)
        e("  v_and_b32 v61, 15, v%d               ; i / n" % lane)
        e("  v_lshlrev_b32 v%d, 4, v%d" % (self.V_VOFF, lane))
        if self.kmode == 1:
            e("  v_and_b32 v62, 3, v61")
            e("  v_mul_u32_u24 v62, %d, v62          ; (i&3)*gs" % self.amap["gs"])
            e("  v_lshrrev_b32 v63, 2, v61")
            e("  v_lshlrev_b32 v63, 8, v63           ; (i>>2)*256")
            e("  v_add_u32 v62, v62, v63")
            e("  v_lshlrev_b32 v63, 4, v60           ; g*16")
        else:
            e("  v_lshrrev_b32 v62, 2, v61")
            e("  v_lshlrev_b32 v62, 8, v62           ; kk*256")
            e("  v_and_b32 v63, 3, v61               ; s")
            e("  v_lshlrev_b32 v63, 4, v63           ; s*16")
            e("  v_lshl_add_u32 v63, v60, 6, v63     ; g*64 + s*16")
        e("  v_add_u32 v%d, v62, v63" % self.V_KOFF)
        e("  v_lshrrev_b32 v62, 3, v61")
        e("  v_lshlrev_b32 v62, 8, v62")
        e("  v_add_u32 v3, v62, v63              ; Q voffset")
        for r in range(4):
            e("  v_add_u32 v%d, %d, v%d" % (self.V_VR + r, r * self.amap["gs"], self.V_VOFF))
        e("  v_lshrrev_b32 v62, 3, v61           ; h")
        e("  v_lshl_add_u32 v62, v60, 1, v62     ; g*2+h")
        e("  v_lshlrev_b32 v62, 4, v62")
        e("  s_mul_i32 s36, s3, %d" % (NT * 128))
        e("  v_add_u32 v%d, s36, v62" % self.V_LA)
        e("  v_and_b32 v62, 1, v61")
        e("  v_cmp_eq_u32 vcc, 1, v62")
        e("  v_mov_b32 v62, 0xffff")
        e("  v_mov_b32 v63, 0xffff0000")
        e("  v_cndmask_b32 v62, v62, v63, vcc")
        e("  v_bfe_u32 v63, v61, 1, 2             ; (n&7)>>1")
        for rr in range(4):
            e("  v_cmp_eq_u32 vcc, %d, v63" % rr)
            e("  s_nop 1")
            e("  v_cndmask_b32 v%d, 0, v62, vcc" % (self.V_MASK + rr))
        e("  s_mov_b32 s34, %s" % hexf(C_SCALE))
        e("  s_mov_b32 s35, %s" % hexf(-C_SCALE))
        e("  v_mov_b32 v%d, 0xff800000" % self.V_TM)
        e("  v_mov_b32 v%d, 0xff800000" % self.V_ST)
        for r in range(4):
            e("  v_mov_b32 v%d, 0" % (self.V_VT + r))
        e("  s_waitcnt lgkmcnt(0)")
        e("  s_lshl_b32 s36, s22, 9")
        e("  s_add_u32 s4, s4, s36")
        e("  s_addc_u32 s5, s5, 0")
        for t in range(4 if self.kmode == 1 else 1):
            e("  global_load_dwordx4 v[%d:%d], v3, s[4:5] offset:%d" % (self.V_Q + 4 * t, self.V_Q + 4 * t + 3, t * 64))
        e("  s_lshl_b32 s36, s22, 21")
        e("  s_mul_i32 s37, s23, %d" % self.WGBYTES)
        e("  s_add_u32 s36, s36, s37")
        e("  s_mul_i32 s37, s3, %d" % self.amap["ws"])
        e("  s_add_u32 s36, s36, s37")
        e("  s_add_u32 s24, s6, s36")
        e("  s_addc_u32 s25, s7, 0")
        e("  s_and_b32 s25, s25, 0xffff")
        e("  s_sub_u32 s26, %d, s37" % self.WGBYTES)
        e("  s_mov_b32 s27, 0x20000")
        e("  s_add_u32 s28, s8, s36")
        e("  s_addc_u32 s29, s9, 0")
        e("  s_and_b32 s29, s29, 0xffff")
        e("  s_mov_b32 s30, s26")
        e("  s_mov_b32 s31, 0x20000")
        e("  s_or_b32 s38, s23, s3")
        e("  s_cmp_lg_u32 s38, 0")
        e("  s_cbranch_scc1 L_notree_issue")
        e("  s_lshl_b32 s36, s22, 8              ; pair*256")
        e("  s_add_u32 s10, s10, s36")
        e("  s_addc_u32 s11, s11, 0")
        e("  s_add_u32 s12, s12, s36")
        e("  s_addc_u32 s13, s13, 0")
        if self.kmode == 1:
            e("  v_lshlrev_b32 v62, 4, v60           ; g*16")
            for t in range(4):
                e("  global_load_dwordx4 v[%d:%d], v62, s[10:11] offset:%d" % (self.V_B + 4 * t, self.V_B + 4 * t + 3, t * 64))
        else:
            e("  v_and_b32 v63, 3, v61")
            e("  v_lshlrev_b32 v63, 4, v63")
            e("  v_lshl_add_u32 v62, v60, 6, v63     ; g*64 + s*16")
            e("  global_load_dwordx4 v[%d:%d], v62, s[10:11]" % (self.V_B + 4, self.V_B + 7))
        e("  v_and_b32 v63, 7, v61")
        e("  v_lshlrev_b32 v63, 1, v63")
        e("  v_lshl_add_u32 v63, v60, 6, v63")
        for r in range(4):
            e("  global_load_ushort v%d, v63, s[12:13] offset:%d" % (self.V_VT + r, r * 16))
        e("  s_lshr_b32 s36, s22, 4")
        e("  s_lshl_b32 s37, s36, 1")
        e("  s_and_b32 s37, s37, 0xfffffffc")
        e("  s_load_dword s39, s[14:15], s37")
        e("L_notree_issue:")
        e("  s_mov_b32 s70, 0")
        for j in range(R):
            self.calc_off()
            self.issue_k(j)
        e("  s_cmp_lg_u32 s38, 0")
        e("  s_cbranch_scc1 L_notree")
        e("  s_waitcnt lgkmcnt(0)")
        e("  s_and_b32 s36, s36, 1")
        e("  s_lshl_b32 s36, s36, 4")
        e("  s_lshr_b32 s39, s39, s36")
        e("  s_lshl_b32 s39, s39, 16")
        e("  s_waitcnt vmcnt(%d)" % (4 * R))
        if self.kmode == 1:
            self.qk(self.V_B, self.V_SA)
            e("  s_nop 7")
            e("  v_sub_f32 v62, 1.0, s39")
            e("  v_mul_f32 v62, %s, v62" % hexf(-1e9 * math.sqrt(128.0)))
            e("  v_add_f32 v%d, v%d, v62" % (self.V_ST, self.V_SA))
        else:
            e("  v_mov_b32 v%d, s34" % self.V_C)
            e("  v_mfma_f32_16x16x32_bf16 v[%d:%d], v[%d:%d], v[%d:%d], 0" % (self.V_D, self.V_D + 3, self.V_B + 4, self.V_B + 7, self.V_Q, self.V_Q + 3))
            e("  s_nop 7")
            self.reduce_dpp(self.V_D, self.V_SA)
            e("  v_sub_f32 v62, 1.0, s39")
            e("  v_mul_f32 v62, %s, v62" % hexf(-1e9 * math.log2(math.e)))
            e("  v_add_f32 v%d, v%d, v62" % (self.V_ST, self.V_SA))
        for r in range(4):
            e("  v_lshlrev_b32 v%d, 16, v%d" % (self.V_VT + r, self.V_VT + r))
        e("L_notree:")
        if self.kmode == 2:
            e("  v_mov_b32 v%d, s34" % self.V_C)
        if self.stamp:
            e("  s_waitcnt vmcnt(%d)" % (4 * (R - 1)))
            e("  s_memrealtime s[46:47]")
            e("  s_waitcnt lgkmcnt(0)")
        n1 = NT // R - 1
        if n1 > 0:
            e("  s_mov_b32 s33, %d" % n1)
            e("L_p1:")
            for j in range(R): self.ktile(j, 'k')
            e("  v_add_u32 v%d, %d, v%d" % (self.V_LA, R * 128, self.V_LA))
            e("  s_sub_u32 s33, s33, 1")
            e("  s_cmp_lg_u32 s33, 0")
            e("  s_cbranch_scc1 L_p1")
        e("  s_mov_b32 s70, 0")
        for j in range(R): self.ktile(j, 'v')
        if self.stamp:
            e("  s_memrealtime s[58:59]")
        tm, t1, m = self.V_TM, self.V_T1, self.V_M
        e("  v_subrev_u32 v%d, %d, v%d" % (self.V_LA, (NT - R) * 128, self.V_LA))
        e("  v_mov_b32 v%d, v%d" % (t1, tm))
        e("  s_nop 1")
        e("  v_permlane16_swap_b32 v%d, v%d" % (tm, t1))
        e("  s_nop 1")
        e("  v_max_f32 v%d, v%d, v%d" % (tm, tm, t1))
        e("  v_mov_b32 v%d, v%d" % (t1, tm))
        e("  s_nop 1")
        e("  v_permlane32_swap_b32 v%d, v%d" % (tm, t1))
        e("  s_nop 1")
        e("  v_max_f32 v%d, v%d, v%d" % (tm, tm, t1))
        e("  v_max_f32 v%d, v%d, v%d" % (m, tm, self.V_ST))
        if self.kmode == 1:
            e("  v_mul_f32 v%d, s35, v%d" % (self.V_NMC, m))
            e("  v_fma_f32 v%d, v%d, s34, v%d" % (t1, self.V_ST, self.V_NMC))
        else:
            e("  v_sub_f32 v%d, 0, v%d" % (self.V_NMC, m))
            e("  v_add_f32 v%d, v%d, v%d" % (t1, self.V_ST, self.V_NMC))
        e("  v_exp_f32 v%d, v%d" % (t1, t1))
        e("  v_cmp_gt_u32 vcc, 16, v%d" % lane)
        e("  s_nop 1")
        e("  v_cndmask_b32 v%d, 0, v%d, vcc" % (self.V_L, t1))
        for r in range(4):
            e("  v_mul_f32 v%d, v%d, v%d" % (self.V_O + r, t1, self.V_VT + r))
        e("  s_waitcnt lgkmcnt(0)")
        e("  ds_read_b128 v[%d:%d], v%d" % (self.V_SA, self.V_SA + 3, self.V_LA))
        if n1 > 0:
            e("  s_mov_b32 s33, %d" % n1)
            e("L_p2:")
            for j in range(R): self.vtile(j, True, 4 * (R - 1), False)
            e("  v_add_u32 v%d, %d, v%d" % (self.V_LA, R * 128, self.V_LA))
            e("  s_sub_u32 s33, s33, 1")
            e("  s_cmp_lg_u32 s33, 0")
            e("  s_cbranch_scc1 L_p2")
        for j in range(R): self.vtile(j, False, 4 * (R - 1 - j), j == R - 1)
        if self.stamp:
            e("  s_memrealtime s[48:49]")
            e("  s_waitcnt lgkmcnt(0)")
            self.store_stamps(False)
        l = self.V_L
        e("  v_mov_b32 v%d, v%d" % (t1, l))
        e("  s_nop 1")
        e("  v_permlane16_swap_b32 v%d, v%d" % (l, t1))
        e("  s_nop 1")
        e("  v_add_f32 v%d, v%d, v%d" % (l, l, t1))
        e("  v_mov_b32 v%d, v%d" % (t1, l))
        e("  s_nop 1")
        e("  v_permlane32_swap_b32 v%d, v%d" % (l, t1))
        e("  s_nop 1")
        e("  v_add_f32 v%d, v%d, v%d" % (l, l, t1))
        e("  v_lshrrev_b32 v60, 4, v%d" % lane)
        e("  v_and_b32 v61, 15, v%d" % lane)
        e("  v_lshrrev_b32 v62, 3, v61")
        e("  v_lshlrev_b32 v62, 9, v62")
        e("  v_lshl_add_u32 v62, v60, 7, v62")
        e("  v_and_b32 v63, 7, v61")
        e("  v_lshl_add_u32 v62, v63, 2, v62")
        e("  s_lshl_b32 s36, s3, 10")
        e("  s_add_u32 s36, s36, %d" % self.EP)
        e("  v_add_u32 v62, s36, v62")
        for r in range(4):
            e("  ds_write_b32 v62, v%d offset:%d" % (self.V_O + r, r * 32))
        e("  v_lshrrev_b32 v63, 3, v61")
        e("  v_lshlrev_b32 v63, 3, v63")
        e("  s_lshl_b32 s36, s3, 4")
        e("  s_add_u32 s36, s36, %d" % (self.EP + W * 1024))
        e("  v_add_u32 v63, s36, v63")
        e("  v_mov_b32 v60, v%d" % m)
        e("  v_mov_b32 v61, v%d" % l)
        e("  ds_write_b64 v63, v[60:61]")
        e("  s_waitcnt vmcnt(0) lgkmcnt(0)")
        e("  s_barrier")
        e("  s_cmp_lg_u32 s3, 0")
        e("  s_cbranch_scc1 L_end")
        if self.stamp: e("  s_memrealtime s[60:61]")
        e("  v_lshlrev_b32 v1, 4, v%d             ; lane*16" % lane)
        e("  v_lshrrev_b32 v2, 5, v%d" % lane)
        e("  v_lshlrev_b32 v2, 3, v2              ; h*8")
        e("  v_add_u32 v2, %d, v2" % (self.EP + W * 1024))
        e("  v_add_u32 v3, %d, v1" % self.EP)
        OB, MB = 76, 76 + 4 * W
        for w in range(W):
            e("  ds_read_b64 v[%d:%d], v2 offset:%d" % (MB + 2 * w, MB + 2 * w + 1, w * 16))
        for w in range(W):
            e("  ds_read_b128 v[%d:%d], v3 offset:%d" % (OB + 4 * w, OB + 4 * w + 3, w * 1024))
        e("  s_waitcnt lgkmcnt(0)")
        self.merge(W, OB, MB, 4, 8)
        e("  s_mul_i32 s36, s22, %d" % S)
        e("  s_add_u32 s36, s36, s23")
        e("  s_lshl_b32 s36, s36, 11")
        e("  s_add_u32 s40, s20, s36")
        e("  s_addc_u32 s41, s21, 0")
        e("  v_mov_b32 v10, 0")
        e("  v_mov_b32 v11, 0")
        e("  global_store_dwordx4 v1, v[4:7], s[40:41] sc1")
        e("  global_store_dwordx4 v1, v[8:11], s[40:41] offset:1024 sc1")
        e("  s_waitcnt vmcnt(0)")
        if self.stamp: e("  s_memrealtime s[62:63]")
        e("  s_lshr_b32 s36, s22, 1")
        e("  s_lshl_b32 s36, s36, 2")
        e("  s_and_b32 s37, s22, 1")
        e("  s_lshl_b32 s37, s37, 4")
        e("  s_lshl_b32 s42, 1, s37")
        e("  v_mov_b32 v12, s36")
        e("  v_mov_b32 v13, s42")
        e("  s_mov_b64 exec, 1")
        e("  global_atomic_add v14, v12, v13, s[18:19] sc0")
        e("  s_waitcnt vmcnt(0)")
        if self.stamp: e("  s_memrealtime s[64:65]")
        e("  v_readfirstlane_b32 s43, v14")
        e("  s_mov_b64 exec, -1")
        e("  s_nop 3")
        e("  s_lshr_b32 s43, s43, s37")
        e("  s_and_b32 s43, s43, 0xffff")
        e("  s_cmp_lg_u32 s43, %d" % (S - 1))
        e("  s_cbranch_scc1 L_end")
        self.final_combine("sc1")
        e("L_end:")
        if self.stamp:
            e("  s_cmp_lg_u32 s3, 0")
            e("  s_cbranch_scc1 L_exit")
            e("  s_waitcnt vmcnt(0)")
            e("  s_memrealtime s[50:51]")
            e("  s_waitcnt lgkmcnt(0)")
            self.store_stamps(True)
        e("L_exit:")
        e("  s_endpgm")
        e('.section .rodata,"a"')
        e(".p2align 6")
        e(".amdhsa_kernel %s_kernel" % NAME)
        nv = self.nvgpr()
        e("  .amdhsa_next_free_vgpr %d" % nv)
        e("  .amdhsa_next_free_sgpr 80")
        e("  .amdhsa_accum_offset %d" % ((nv + 3) // 4 * 4))
        e("  .amdhsa_group_segment_fixed_size 0")
        e("  .amdhsa_kernarg_size 72")
        e("  .amdhsa_user_sgpr_count 2")
        e("  .amdhsa_user_sgpr_kernarg_segment_ptr 1")
        e("  .amdhsa_system_sgpr_workgroup_id_x 1")
        e(".end_amdhsa_kernel")
        return "\n".join(self.lines) + "\n"

    def store_stamps(self, final):
        e = self.e
        e("  s_mul_i32 s52, s2, %d" % self.W)
        e("  s_add_u32 s52, s52, s3")
        e("  s_lshl_b32 s52, s52, 6")
        e("  s_add_u32 s52, s52, 0x20000000")
        e("  s_add_u32 s54, s20, s52")
        e("  s_addc_u32 s55, s21, 0")
        if not final:
            e("  v_mov_b32 v60, s44"); e("  v_mov_b32 v61, s46"); e("  v_mov_b32 v62, s48"); e("  v_mov_b32 v63, s2")
            e("  v_mov_b32 v3, 0")
            e("  global_store_dwordx4 v3, v[60:63], s[54:55]")
            e("  v_mov_b32 v64, s58")
            e("  global_store_dword v3, v64, s[54:55] offset:48")
            for r in range(60, 68): e("  s_mov_b32 s%d, 0" % r)
        else:
            e("  v_mov_b32 v60, s50")
            e("  s_getreg_b32 s56, hwreg(HW_REG_XCC_ID)")
            e("  s_getreg_b32 s57, hwreg(HW_REG_HW_ID)")
            e("  v_mov_b32 v61, s56"); e("  v_mov_b32 v62, s57"); e("  v_mov_b32 v63, 0"); e("  v_mov_b32 v3, 0")
            e("  global_store_dwordx4 v3, v[60:63], s[54:55] offset:16")
            e("  v_mov_b32 v64, s60"); e("  v_mov_b32 v65, s62"); e("  v_mov_b32 v66, s64"); e("  v_mov_b32 v67, s66")
            e("  global_store_dwordx4 v3, v[64:67], s[54:55] offset:32")

    def merge(self, n, OB, MB, OD, MD):
        e = self.e
        e("  v_mov_b32 v%d, v%d" % (MD, MB))
        for w in range(1, n): e("  v_max_f32 v%d, v%d, v%d" % (MD, MD, MB + 2 * w))
        for w in range(n): e("  v_sub_f32 v%d, v%d, v%d" % (MB + 2 * w, MB + 2 * w, MD))
        if self.kmode == 1:
            for w in range(n): e("  v_mul_f32 v%d, s34, v%d" % (MB + 2 * w, MB + 2 * w))
        for w in range(n): e("  v_exp_f32 v%d, v%d" % (MB + 2 * w, MB + 2 * w))
        e("  s_nop 0")
        e("  v_mul_f32 v%d, v%d, v%d" % (MD + 1, MB, MB + 1))
        for w in range(1, n): e("  v_fmac_f32 v%d, v%d, v%d" % (MD + 1, MB + 2 * w, MB + 2 * w + 1))
        for r in range(4): e("  v_mul_f32 v%d, v%d, v%d" % (OD + r, MB, OB + r))
        for w in range(1, n):
            for r in range(4): e("  v_fmac_f32 v%d, v%d, v%d" % (OD + r, MB + 2 * w, OB + 4 * w + r))

    def final_combine(self, pol):
        e = self.e; S = self.S
        e("  s_mul_i32 s36, s22, %d" % (S * 2048))
        e("  s_add_u32 s40, s20, s36")
        e("  s_addc_u32 s41, s21, 0")
        OB = 76; MB = 76 + 4 * S
        for s in range(S):
            off = s * 2048
            if off + 1024 + 16 <= 4095:
                e("  global_load_dwordx4 v[%d:%d], v1, s[40:41] offset:%d %s" % (OB + 4 * s, OB + 4 * s + 3, off, pol))
                e("  global_load_dwordx2 v[%d:%d], v1, s[40:41] offset:%d %s" % (MB + 2 * s, MB + 2 * s + 1, off + 1024, pol))
            else:
                e("  v_add_u32 v3, %d, v1" % off)
                e("  global_load_dwordx4 v[%d:%d], v3, s[40:41] %s" % (OB + 4 * s, OB + 4 * s + 3, pol))
                e("  global_load_dwordx2 v[%d:%d], v3, s[40:41] offset:1024 %s" % (MB + 2 * s, MB + 2 * s + 1, pol))
        e("  s_waitcnt vmcnt(0)")
        if self.stamp: e("  s_memrealtime s[66:67]")
        self.merge(S, OB, MB, 4, 8)
        e("  v_rcp_f32 v9, v9")
        e("  s_nop 0")
        for r in range(4): e("  v_mul_f32 v%d, v%d, v9" % (4 + r, 4 + r))
        e("  v_cvt_pk_bf16_f32 v4, v4, v5")
        e("  v_cvt_pk_bf16_f32 v5, v6, v7")
        e("  s_lshl_b32 s36, s22, 9")
        e("  s_add_u32 s16, s16, s36")
        e("  s_addc_u32 s17, s17, 0")
        e("  v_lshrrev_b32 v2, 1, v1             ; lane*8")
        e("  global_store_dwordx2 v2, v[4:5], s[16:17]")

if __name__ == "__main__":
    ap = argparse.ArgumentParser()
    ap.add_argument("-o", default="cdna_kernels/%s.s" % NAME)
    ap.add_argument("--S", type=int, default=2)
    ap.add_argument("--W", type=int, default=4)
    ap.add_argument("--R", type=int, default=8)
    ap.add_argument("--pol", default="nt")
    ap.add_argument("--map", type=int, default=0)
    ap.add_argument("--stamp", action="store_true")
    ap.add_argument("--ldsmin", type=int, default=98304)
    ap.add_argument("--amap", default="")
    ap.add_argument("--kmode", type=int, default=1)
    ap.add_argument("--kpol", default=None)
    ap.add_argument("--wv", type=int, default=63)
    ap.add_argument("--fine", type=int, default=0)
    a = ap.parse_args()
    g = Gen2(S=a.S, W=a.W, R=a.R, pol=a.pol, mapmode=a.map, stamp=a.stamp, ldsmin=a.ldsmin, amap=parse_amap(a.amap), kmode=a.kmode, kpol=a.kpol, wv=a.wv, fine=a.fine)
    open(a.o, "w").write(g.build())
    print("wrote", a.o, "vgprs", g.nvgpr(), "lds", g.lds)
```

```python
import struct, sys, math, argparse
sys.path.insert(0, "gen")
from gen import NAME, HEADER, f32bits, hexf, C_SCALE, parse_amap

class Gen2:
    V_KOFF, V_VOFF = 1, 2
    V_Q = 4; V_MASK = 20; V_O = 24; V_SA = 28; V_P = 32; V_B = 36
    V_M, V_NMC, V_L, V_TM, V_T1, V_ST, V_LA, V_LANE = 52, 53, 54, 55, 56, 57, 58, 59
    V_VT = 64; V_SB = 68; V_VR = 72; RING = 76
    V_D = 36
    V_C = 60

    def __init__(self, S=2, W=4, R=8, pol="nt", mapmode=0, stamp=False, ldsmin=98304, amap=None, kmode=1, kpol=None, wv=63, fine=0, boost=None, kboost=None, kfine=0, trace=False, fast=False):
        self.fast = fast
        self.trace = trace
        self.kfine = kfine
        self.boost = boost
        self.kboost = kboost
        self.depth = fine
        self.fine = fine
        self.wv = wv
        self.kmode = kmode
        self.kpol = pol if kpol is None else kpol
        self.S, self.W, self.R, self.pol, self.mapmode, self.stamp = S, W, R, pol, mapmode, stamp
        self.NWG = 128 * S
        self.KEYS_WG = 8192 // S
        self.WGBYTES = self.KEYS_WG * 256
        self.NT = self.KEYS_WG // 16 // W
        assert self.NT % R == 0 and R % 2 == 0
        lw = int(math.log2(W))
        if amap is None:
            amap = dict(gs=1024, ws=4096, fields=[(0, int(math.log2(self.NT)), 12 + lw)])
        self.amap = amap
        self.SC_BYTES = W * self.NT * 128
        self.EP = self.SC_BYTES
        self.lds = max(self.EP + W * 1024 + W * 16, ldsmin)
        self.lines = []

    def e(self, s): self.lines.append(s)
    def slot(self, j): return self.RING + 16 * j
    def nvgpr(self): return max(self.RING + 16 * self.R, 76 + 6 * self.W + 2, 76 + 6 * self.S + 4)

    def calc_off(self):
        first = True
        for (lo, n, pos) in self.amap["fields"]:
            dst = "s68" if first else "s71"
            self.e("  s_bfe_u32 %s, s70, 0x%x" % (dst, (n << 16) | lo))
            if pos: self.e("  s_lshl_b32 %s, %s, %d" % (dst, dst, pos))
            if not first: self.e("  s_or_b32 s68, s68, s71")
            first = False
        self.e("  s_add_u32 s70, s70, 1")

    def issue_k(self, j):
        k = self.slot(j)
        gs = self.amap["gs"]
        for t in range(4):
            if self.kmode == 1:
                self.e("  buffer_load_dwordx4 v[%d:%d], v%d, s[24:27], s68 offen offset:%d %s" %
                   (k + 4 * t, k + 4 * t + 3, self.V_KOFF, t * 64, self.kpol))
            else:
                assert gs * 3 <= 3072
                self.e("  buffer_load_dwordx4 v[%d:%d], v%d, s[24:27], s68 offen offset:%d %s" %
                   (k + 4 * t, k + 4 * t + 3, self.V_KOFF, t * gs, self.kpol))

    def issue_v(self, j):
        v = self.slot(j); gs = self.amap["gs"]
        for r in range(4):
            if gs * 3 <= 3072:
                self.e("  buffer_load_dwordx4 v[%d:%d], v%d, s[28:31], s68 offen offset:%d %s" %
                       (v + 4 * r, v + 4 * r + 3, self.V_VOFF, r * gs, self.pol))
            else:
                self.e("  buffer_load_dwordx4 v[%d:%d], v%d, s[28:31], s68 offen %s" %
                       (v + 4 * r, v + 4 * r + 3, self.V_VR + r, self.pol))

    def issue_k1(self, j, r):
        k = self.slot(j); gs = self.amap["gs"]
        self.e("  buffer_load_dwordx4 v[%d:%d], v%d, s[24:27], s68 offen offset:%d %s" %
               (k + 4 * r, k + 4 * r + 3, self.V_KOFF, r * gs, self.kpol))
    def issue_v1(self, j, r):
        v = self.slot(j); gs = self.amap["gs"]
        self.e("  buffer_load_dwordx4 v[%d:%d], v%d, s[28:31], s68 offen offset:%d %s" %
               (v + 4 * r, v + 4 * r + 3, self.V_VOFF, r * gs, self.pol))

    def qk(self, k, s):
        q = self.V_Q
        for t in range(4):
            c = "0" if t == 0 else "v[%d:%d]" % (s, s + 3)
            self.e("  v_mfma_f32_16x16x32_bf16 v[%d:%d], v[%d:%d], v[%d:%d], %s" %
                   (s, s + 3, k + 4 * t, k + 4 * t + 3, q + 4 * t, q + 4 * t + 3, c))

    def ktile(self, j, nxt):
        R = self.R
        s = self.V_SA if j % 2 == 0 else self.V_SB
        tm = self.V_TM
        if self.fine:
            assert self.kmode == 2
            k = self.slot(j); q = self.V_Q; d = self.V_D
            self.calc_off()
            for r in range(4):
                self.e("  s_waitcnt vmcnt(%d)" % min(self.depth - 1, 4 * R - 1))
                self.e("  v_mfma_f32_16x16x32_bf16 v[%d:%d], v[%d:%d], v[%d:%d], 0" %
                       (d + 4 * r, d + 4 * r + 3, k + 4 * r, k + 4 * r + 3, q, q + 3))
                if nxt == 'k': self.issue_k1(j, r)
                else: self.issue_v1(j, r)
            self.e("  s_nop 0")
            for r in range(4):
                if r == 3: self.e("  s_nop 0")
                self.reduce_dpp(self.V_D + 4 * r, s + r)
            self.e("  s_nop 0")
            self.e("  v_max3_f32 v%d, v%d, v%d, v%d" % (tm, s, s + 1, tm))
            self.e("  v_max3_f32 v%d, v%d, v%d, v%d" % (tm, s + 2, s + 3, tm))
            self.e("  ds_write_b128 v%d, v[%d:%d] offset:%d" % (self.V_LA, s, s + 3, j * 128))
            self.trace_pt(12)
            return
        self.e("  s_waitcnt vmcnt(%d)" % min(self.wv, 4 * (R - 1)))
        if self.kmode == 1:
            self.qk(self.slot(j), s)
        else:
            k = self.slot(j); q = self.V_Q; d = self.V_D
            for r in range(4):
                self.e("  v_mfma_f32_16x16x32_bf16 v[%d:%d], v[%d:%d], v[%d:%d], 0" %
                       (d + 4 * r, d + 4 * r + 3, k + 4 * r, k + 4 * r + 3, q, q + 3))
        self.calc_off()
        if nxt == 'k': self.issue_k(j)
        else: self.issue_v(j)
        self.e("  s_nop 1")
        if self.kmode == 2:
            for r in range(4):
                self.reduce_dpp(self.V_D + 4 * r, s + r)
            self.e("  s_nop 0")
        self.e("  v_max3_f32 v%d, v%d, v%d, v%d" % (tm, s, s + 1, tm))
        self.e("  v_max3_f32 v%d, v%d, v%d, v%d" % (tm, s + 2, s + 3, tm))
        self.e("  ds_write_b128 v%d, v[%d:%d] offset:%d" % (self.V_LA, s, s + 3, j * 128))

    def trace_pt(self, vreg):
        if not self.trace: return
        self.e("  s_memrealtime s[74:75]")
        self.e("  s_waitcnt lgkmcnt(0)")
        self.e("  s_mov_b32 m0, s72")
        self.e("  v_writelane_b32 v%d, s74, m0" % vreg)
        self.e("  s_add_u32 s72, s72, 1")

    def reduce_dpp(self, d, dst):
        self.e("  v_mul_f32_dpp v%d, v%d, v%d quad_perm:[0,0,0,0] row_mask:0xf bank_mask:0xf" % (dst, d, self.V_C))
        for s in range(1, 4):
            self.e("  v_fmac_f32_dpp v%d, v%d, v%d quad_perm:[%d,%d,%d,%d] row_mask:0xf bank_mask:0xf" %
                   (dst, d + s, self.V_C, s, s, s, s))

    def vtile(self, j, nxt, wait, last):
        s = self.V_SA if j % 2 == 0 else self.V_SB
        sn = self.V_SB if j % 2 == 0 else self.V_SA
        p, b, o, mk, l, nmc = self.V_P, self.V_B, self.V_O, self.V_MASK, self.V_L, self.V_NMC
        v = self.slot(j)
        if not last:
            self.e("  ds_read_b128 v[%d:%d], v%d offset:%d" % (sn, sn + 3, self.V_LA, (j + 1) * 128))
            self.e("  s_waitcnt lgkmcnt(1)")
        else:
            self.e("  s_waitcnt lgkmcnt(0)")
        for r in range(4):
            if self.kmode == 1:
                self.e("  v_fma_f32 v%d, v%d, s34, v%d" % (p + r, s + r, nmc))
            else:
                self.e("  v_add_f32 v%d, v%d, v%d" % (p + r, s + r, nmc))
        for r in range(4):
            self.e("  v_exp_f32 v%d, v%d" % (p + r, p + r))
        self.e("  s_nop 0")
        for r in range(4):
            self.e("  v_add_f32 v%d, v%d, v%d" % (l, l, p + r))
        for r in range(4):
            self.e("  v_cvt_pk_bf16_f32 v%d, v%d, v%d" % (p + r, p + r, p + r))
        for r in range(4):
            for rr in range(4):
                self.e("  v_and_b32 v%d, v%d, v%d" % (b + 4 * r + rr, p + r, mk + rr))
        if self.fine:
            if nxt: self.calc_off()
            for r in range(4):
                w = (4 * self.R - 1) if nxt else (wait + 3 - r)
                self.e("  s_waitcnt vmcnt(%d)" % min(self.depth - 1, w))
                self.e("  v_mfma_f32_16x16x32_bf16 v[%d:%d], v[%d:%d], v[%d:%d], v[%d:%d]" %
                       (o, o + 3, v + 4 * r, v + 4 * r + 3, b + 4 * r, b + 4 * r + 3, o, o + 3))
                if nxt: self.issue_v1(j, r)
            self.trace_pt(13)
            return
        self.e("  s_waitcnt vmcnt(%d)" % min(self.wv, wait))
        for r in range(4):
            self.e("  v_mfma_f32_16x16x32_bf16 v[%d:%d], v[%d:%d], v[%d:%d], v[%d:%d]" %
                   (o, o + 3, v + 4 * r, v + 4 * r + 3, b + 4 * r, b + 4 * r + 3, o, o + 3))
        if nxt:
            self.calc_off()
            self.issue_v(j)

    def build(self):
        S, W, R, NT = self.S, self.W, self.R, self.NT
        e = self.e
        lane = self.V_LANE
        e(HEADER.rstrip("\n"))
        e("; @launch grid=(%d,1,1) block=(%d,1,1) lds=%d" % (self.NWG, 64 * W, self.lds))
        e('.amdgcn_target "amdgcn-amd-amdhsa--gfx950"')
        e(".text")
        e(".globl %s_kernel" % NAME)
        e(".p2align 8")
        e(".type %s_kernel,@function" % NAME)
        e("%s_kernel:" % NAME)
        e("  s_cmp_ge_u32 s2, %d" % self.NWG)
        e("  s_cbranch_scc1 L_exit")
        if self.stamp: e("  s_memrealtime s[44:45]")
        e("  s_load_dwordx16 s[4:19], s[0:1], 0")
        e("  s_load_dwordx2 s[20:21], s[0:1], 64")
        e("  v_and_b32 v%d, 63, v0" % lane)
        e("  v_lshrrev_b32 v3, 6, v0")
        e("  s_nop 0")
        e("  v_readfirstlane_b32 s3, v3")
        lg = int(math.log2(S))
        if self.mapmode == 0:
            e("  s_and_b32 s22, s2, 127"); e("  s_lshr_b32 s23, s2, 7")
        elif self.mapmode == 1:
            e("  s_lshr_b32 s22, s2, %d" % lg); e("  s_and_b32 s23, s2, %d" % (S - 1))
        elif self.mapmode == 2:
            e("  s_and_b32 s22, s2, 7"); e("  s_lshl_b32 s22, s22, 4")
            e("  s_lshr_b32 s23, s2, %d" % (3 + lg)); e("  s_add_u32 s22, s22, s23")
            e("  s_lshr_b32 s23, s2, 3"); e("  s_and_b32 s23, s23, %d" % (S - 1))
        elif self.mapmode == 3:
            e("  s_lshr_b32 s23, s2, %d" % (3 + lg))
            e("  s_add_u32 s22, s2, s23"); e("  s_and_b32 s22, s22, 7")
            e("  s_lshl_b32 s23, s23, 3"); e("  s_add_u32 s22, s22, s23")
            e("  s_lshr_b32 s23, s2, 3"); e("  s_and_b32 s23, s23, %d" % (S - 1))
        e("  v_lshrrev_b32 v60, 4, v%d            ; g" % lane)
        e("  v_and_b32 v61, 15, v%d               ; i / n" % lane)
        e("  v_lshlrev_b32 v%d, 4, v%d" % (self.V_VOFF, lane))
        if self.kmode == 1:
            e("  v_and_b32 v62, 3, v61")
            e("  v_mul_u32_u24 v62, %d, v62          ; (i&3)*gs" % self.amap["gs"])
            e("  v_lshrrev_b32 v63, 2, v61")
            e("  v_lshlrev_b32 v63, 8, v63           ; (i>>2)*256")
            e("  v_add_u32 v62, v62, v63")
            e("  v_lshlrev_b32 v63, 4, v60           ; g*16")
        else:
            e("  v_lshrrev_b32 v62, 2, v61")
            e("  v_lshlrev_b32 v62, 8, v62           ; kk*256")
            e("  v_and_b32 v63, 3, v61               ; s")
            e("  v_lshlrev_b32 v63, 4, v63           ; s*16")
            e("  v_lshl_add_u32 v63, v60, 6, v63     ; g*64 + s*16")
        e("  v_add_u32 v%d, v62, v63" % self.V_KOFF)
        e("  v_lshrrev_b32 v62, 3, v61")
        e("  v_lshlrev_b32 v62, 8, v62")
        e("  v_add_u32 v3, v62, v63              ; Q voffset")
        for r in range(4):
            e("  v_add_u32 v%d, %d, v%d" % (self.V_VR + r, r * self.amap["gs"], self.V_VOFF))
        e("  v_lshrrev_b32 v62, 3, v61           ; h")
        e("  v_lshl_add_u32 v62, v60, 1, v62     ; g*2+h")
        e("  v_lshlrev_b32 v62, 4, v62")
        e("  s_mul_i32 s36, s3, %d" % (NT * 128))
        e("  v_add_u32 v%d, s36, v62" % self.V_LA)
        e("  v_and_b32 v62, 1, v61")
        e("  v_cmp_eq_u32 vcc, 1, v62")
        e("  v_mov_b32 v62, 0xffff")
        e("  v_mov_b32 v63, 0xffff0000")
        e("  v_cndmask_b32 v62, v62, v63, vcc")
        e("  v_bfe_u32 v63, v61, 1, 2             ; (n&7)>>1")
        for rr in range(4):
            e("  v_cmp_eq_u32 vcc, %d, v63" % rr)
            e("  s_nop 1")
            e("  v_cndmask_b32 v%d, 0, v62, vcc" % (self.V_MASK + rr))
        e("  s_mov_b32 s34, %s" % hexf(C_SCALE))
        e("  s_mov_b32 s35, %s" % hexf(-C_SCALE))
        e("  v_mov_b32 v%d, 0xff800000" % self.V_TM)
        e("  v_mov_b32 v%d, 0xff800000" % self.V_ST)
        for r in range(4):
            e("  v_mov_b32 v%d, 0" % (self.V_VT + r))
        e("  s_waitcnt lgkmcnt(0)")
        e("  s_lshl_b32 s36, s22, 9")
        e("  s_add_u32 s4, s4, s36")
        e("  s_addc_u32 s5, s5, 0")
        for t in range(4 if self.kmode == 1 else 1):
            e("  global_load_dwordx4 v[%d:%d], v3, s[4:5] offset:%d" % (self.V_Q + 4 * t, self.V_Q + 4 * t + 3, t * 64))
        e("  s_lshl_b32 s36, s22, 21")
        e("  s_mul_i32 s37, s23, %d" % self.WGBYTES)
        e("  s_add_u32 s36, s36, s37")
        e("  s_mul_i32 s37, s3, %d" % self.amap["ws"])
        e("  s_add_u32 s36, s36, s37")
        e("  s_add_u32 s24, s6, s36")
        e("  s_addc_u32 s25, s7, 0")
        e("  s_and_b32 s25, s25, 0xffff")
        e("  s_sub_u32 s26, %d, s37" % self.WGBYTES)
        e("  s_mov_b32 s27, 0x20000")
        e("  s_add_u32 s28, s8, s36")
        e("  s_addc_u32 s29, s9, 0")
        e("  s_and_b32 s29, s29, 0xffff")
        e("  s_mov_b32 s30, s26")
        e("  s_mov_b32 s31, 0x20000")
        e("  s_or_b32 s38, s23, s3")
        e("  s_cmp_lg_u32 s38, 0")
        e("  s_cbranch_scc1 L_notree_issue")
        e("  s_lshl_b32 s36, s22, 8              ; pair*256")
        e("  s_add_u32 s10, s10, s36")
        e("  s_addc_u32 s11, s11, 0")
        e("  s_add_u32 s12, s12, s36")
        e("  s_addc_u32 s13, s13, 0")
        if self.kmode == 1:
            e("  v_lshlrev_b32 v62, 4, v60           ; g*16")
            for t in range(4):
                e("  global_load_dwordx4 v[%d:%d], v62, s[10:11] offset:%d" % (self.V_B + 4 * t, self.V_B + 4 * t + 3, t * 64))
        else:
            e("  v_and_b32 v63, 3, v61")
            e("  v_lshlrev_b32 v63, 4, v63")
            e("  v_lshl_add_u32 v62, v60, 6, v63     ; g*64 + s*16")
            e("  global_load_dwordx4 v[%d:%d], v62, s[10:11]" % (self.V_B + 4, self.V_B + 7))
        e("  v_and_b32 v63, 7, v61")
        e("  v_lshlrev_b32 v63, 1, v63")
        e("  v_lshl_add_u32 v63, v60, 6, v63")
        for r in range(4):
            e("  global_load_ushort v%d, v63, s[12:13] offset:%d" % (self.V_VT + r, r * 16))
        e("  s_lshr_b32 s36, s22, 4")
        e("  s_lshl_b32 s37, s36, 1")
        e("  s_and_b32 s37, s37, 0xfffffffc")
        e("  s_load_dword s39, s[14:15], s37")
        e("L_notree_issue:")
        e("  s_mov_b32 s70, 0")
        for j in range(R):
            self.calc_off()
            self.issue_k(j)
        e("  s_cmp_lg_u32 s38, 0")
        e("  s_cbranch_scc1 L_notree")
        e("  s_waitcnt lgkmcnt(0)")
        e("  s_and_b32 s36, s36, 1")
        e("  s_lshl_b32 s36, s36, 4")
        e("  s_lshr_b32 s39, s39, s36")
        e("  s_lshl_b32 s39, s39, 16")
        e("  s_waitcnt vmcnt(%d)" % (4 * R))
        if self.kmode == 1:
            self.qk(self.V_B, self.V_SA)
            e("  s_nop 7")
            e("  v_sub_f32 v62, 1.0, s39")
            e("  v_mul_f32 v62, %s, v62" % hexf(-1e9 * math.sqrt(128.0)))
            e("  v_add_f32 v%d, v%d, v62" % (self.V_ST, self.V_SA))
        else:
            e("  v_mov_b32 v%d, s34" % self.V_C)
            e("  v_mfma_f32_16x16x32_bf16 v[%d:%d], v[%d:%d], v[%d:%d], 0" % (self.V_D, self.V_D + 3, self.V_B + 4, self.V_B + 7, self.V_Q, self.V_Q + 3))
            e("  s_nop 7")
            self.reduce_dpp(self.V_D, self.V_SA)
            e("  v_sub_f32 v62, 1.0, s39")
            e("  v_mul_f32 v62, %s, v62" % hexf(-1e9 * math.log2(math.e)))
            e("  v_add_f32 v%d, v%d, v62" % (self.V_ST, self.V_SA))
        for r in range(4):
            e("  v_lshlrev_b32 v%d, 16, v%d" % (self.V_VT + r, self.V_VT + r))
        e("L_notree:")
        if self.kmode == 2:
            e("  v_mov_b32 v%d, s34" % self.V_C)
        if self.stamp:
            e("  s_waitcnt vmcnt(%d)" % (4 * (R - 1)))
            e("  s_memrealtime s[46:47]")
            e("  s_waitcnt lgkmcnt(0)")
        if self.trace: e("  s_mov_b32 s72, 0")
        if self.kfine: self.depth = self.kfine
        n1 = NT // R - 1
        if n1 > 0:
            e("  s_mov_b32 s33, %d" % n1)
            e("L_p1:")
            for j in range(R): self.ktile(j, 'k')
            e("  v_add_u32 v%d, %d, v%d" % (self.V_LA, R * 128, self.V_LA))
            e("  s_sub_u32 s33, s33, 1")
            e("  s_cmp_lg_u32 s33, 0")
            e("  s_cbranch_scc1 L_p1")
        e("  s_mov_b32 s70, 0")
        for j in range(R): self.ktile(j, 'v')
        if self.trace: e("  s_mov_b32 s72, 0")
        if self.stamp:
            e("  s_memrealtime s[58:59]")
        tm, t1, m = self.V_TM, self.V_T1, self.V_M
        e("  v_subrev_u32 v%d, %d, v%d" % (self.V_LA, (NT - R) * 128, self.V_LA))
        e("  v_mov_b32 v%d, v%d" % (t1, tm))
        e("  s_nop 1")
        e("  v_permlane16_swap_b32 v%d, v%d" % (tm, t1))
        e("  s_nop 1")
        e("  v_max_f32 v%d, v%d, v%d" % (tm, tm, t1))
        e("  v_mov_b32 v%d, v%d" % (t1, tm))
        e("  s_nop 1")
        e("  v_permlane32_swap_b32 v%d, v%d" % (tm, t1))
        e("  s_nop 1")
        e("  v_max_f32 v%d, v%d, v%d" % (tm, tm, t1))
        e("  v_max_f32 v%d, v%d, v%d" % (m, tm, self.V_ST))
        if self.kmode == 1:
            e("  v_mul_f32 v%d, s35, v%d" % (self.V_NMC, m))
            e("  v_fma_f32 v%d, v%d, s34, v%d" % (t1, self.V_ST, self.V_NMC))
        else:
            e("  v_sub_f32 v%d, 0, v%d" % (self.V_NMC, m))
            e("  v_add_f32 v%d, v%d, v%d" % (t1, self.V_ST, self.V_NMC))
        e("  v_exp_f32 v%d, v%d" % (t1, t1))
        e("  v_cmp_gt_u32 vcc, 16, v%d" % lane)
        e("  s_nop 1")
        e("  v_cndmask_b32 v%d, 0, v%d, vcc" % (self.V_L, t1))
        for r in range(4):
            e("  v_mul_f32 v%d, v%d, v%d" % (self.V_O + r, t1, self.V_VT + r))
        e("  s_waitcnt lgkmcnt(0)")
        e("  ds_read_b128 v[%d:%d], v%d" % (self.V_SA, self.V_SA + 3, self.V_LA))
        nb = (self.boost[0] - 1) if self.boost else 0
        for (cnt, dep, lab) in ((n1 - nb, self.fine, "L_p2"), (nb, self.boost[1] if self.boost else 0, "L_p2b")):
            if cnt <= 0: continue
            self.depth = dep
            e("  s_mov_b32 s33, %d" % cnt)
            e("%s:" % lab)
            for j in range(R): self.vtile(j, True, 4 * (R - 1), False)
            e("  v_add_u32 v%d, %d, v%d" % (self.V_LA, R * 128, self.V_LA))
            e("  s_sub_u32 s33, s33, 1")
            e("  s_cmp_lg_u32 s33, 0")
            e("  s_cbranch_scc1 %s" % lab)
        self.depth = self.boost[1] if self.boost else self.fine
        for j in range(R): self.vtile(j, False, 4 * (R - 1 - j), j == R - 1)
        if self.stamp:
            e("  s_memrealtime s[48:49]")
            e("  s_waitcnt lgkmcnt(0)")
            self.store_stamps(False)
        if self.trace:
            e("  s_mul_i32 s52, s2, %d" % self.W)
            e("  s_add_u32 s52, s52, s3")
            e("  s_lshl_b32 s52, s52, 9")
            e("  s_add_u32 s52, s52, 0x20100000")
            e("  s_add_u32 s54, s20, s52")
            e("  s_addc_u32 s55, s21, 0")
            e("  v_lshlrev_b32 v14, 2, v%d" % lane)
            e("  global_store_dword v14, v12, s[54:55]")
            e("  global_store_dword v14, v13, s[54:55] offset:256")
        l = self.V_L
        e("  v_mov_b32 v%d, v%d" % (t1, l))
        e("  s_nop 1")
        e("  v_permlane16_swap_b32 v%d, v%d" % (l, t1))
        e("  s_nop 1")
        e("  v_add_f32 v%d, v%d, v%d" % (l, l, t1))
        e("  v_mov_b32 v%d, v%d" % (t1, l))
        e("  s_nop 1")
        e("  v_permlane32_swap_b32 v%d, v%d" % (l, t1))
        e("  s_nop 1")
        e("  v_add_f32 v%d, v%d, v%d" % (l, l, t1))
        e("  v_lshrrev_b32 v60, 4, v%d" % lane)
        e("  v_and_b32 v61, 15, v%d" % lane)
        e("  v_lshrrev_b32 v62, 3, v61")
        e("  v_lshlrev_b32 v62, 9, v62")
        e("  v_lshl_add_u32 v62, v60, 7, v62")
        e("  v_and_b32 v63, 7, v61")
        e("  v_lshl_add_u32 v62, v63, 2, v62")
        e("  s_lshl_b32 s36, s3, 10")
        e("  s_add_u32 s36, s36, %d" % self.EP)
        e("  v_add_u32 v62, s36, v62")
        for r in range(4):
            e("  ds_write_b32 v62, v%d offset:%d" % (self.V_O + r, r * 32))
        e("  v_lshrrev_b32 v63, 3, v61")
        e("  v_lshlrev_b32 v63, 3, v63")
        e("  s_lshl_b32 s36, s3, 4")
        e("  s_add_u32 s36, s36, %d" % (self.EP + W * 1024))
        e("  v_add_u32 v63, s36, v63")
        e("  v_mov_b32 v60, v%d" % m)
        e("  v_mov_b32 v61, v%d" % l)
        e("  ds_write_b64 v63, v[60:61]")
        e("  s_waitcnt vmcnt(0) lgkmcnt(0)")
        e("  s_barrier")
        e("  s_cmp_lg_u32 s3, 0")
        e("  s_cbranch_scc1 L_end")
        if self.stamp: e("  s_memrealtime s[60:61]")
        e("  s_lshr_b32 s36, s22, 1")
        e("  s_lshl_b32 s36, s36, 2")
        e("  s_and_b32 s37, s22, 1")
        e("  s_lshl_b32 s37, s37, 4")
        e("  v_mov_b32 v12, s36")
        if self.fast:
            e("  v_mov_b32 v13, 0")
            e("  s_mov_b64 exec, 1")
            e("  global_atomic_add v14, v12, v13, s[18:19] sc0")
            e("  s_mov_b64 exec, -1")
        e("  v_lshlrev_b32 v1, 4, v%d             ; lane*16" % lane)
        e("  v_lshrrev_b32 v2, 5, v%d" % lane)
        e("  v_lshlrev_b32 v2, 3, v2              ; h*8")
        e("  v_add_u32 v2, %d, v2" % (self.EP + W * 1024))
        e("  v_add_u32 v3, %d, v1" % self.EP)
        OB, MB = 76, 76 + 4 * W
        for w in range(W):
            e("  ds_read_b64 v[%d:%d], v2 offset:%d" % (MB + 2 * w, MB + 2 * w + 1, w * 16))
        for w in range(W):
            e("  ds_read_b128 v[%d:%d], v3 offset:%d" % (OB + 4 * w, OB + 4 * w + 3, w * 1024))
        e("  s_mul_i32 s42, s22, %d" % S)
        e("  s_add_u32 s43, s42, s23")
        e("  s_lshl_b32 s43, s43, 11")
        e("  s_add_u32 s40, s20, s43")
        e("  s_addc_u32 s41, s21, 0")
        if self.fast:
            assert S == 2
            e("  s_xor_b32 s43, s43, 2048")
            e("  s_add_u32 s72, s20, s43")
            e("  s_addc_u32 s73, s21, 0")
        e("  s_waitcnt lgkmcnt(0)")
        self.merge(W, OB, MB, 4, 8)
        e("  v_mov_b32 v10, 0")
        e("  v_mov_b32 v11, 0")
        e("  global_store_dwordx4 v1, v[4:7], s[40:41] sc1")
        e("  global_store_dwordx4 v1, v[8:11], s[40:41] offset:1024 sc1")
        if self.fast:
            e("  s_waitcnt vmcnt(2)")
            e("  v_readfirstlane_b32 s43, v14")
            e("  s_nop 3")
            e("  s_lshr_b32 s43, s43, s37")
            e("  s_and_b32 s43, s43, 0xff")
            e("  s_cmp_lg_u32 s43, 0")
            e("  s_cbranch_scc1 L_combine")
        e("  s_waitcnt vmcnt(0)")
        if self.stamp: e("  s_memrealtime s[62:63]")
        e("  s_lshl_b32 s42, 1, s37")
        e("  v_mov_b32 v13, s42")
        e("  s_mov_b64 exec, 1")
        e("  global_atomic_add v14, v12, v13, s[18:19] sc0")
        e("  s_waitcnt vmcnt(0)")
        if self.stamp: e("  s_memrealtime s[64:65]")
        e("  v_readfirstlane_b32 s43, v14")
        e("  s_mov_b64 exec, -1")
        e("  s_nop 3")
        e("  s_lshr_b32 s43, s43, s37")
        e("  s_and_b32 s43, s43, 0xff")
        e("  s_cmp_lg_u32 s43, %d" % (S - 1))
        e("  s_cbranch_scc1 L_end")
        if self.fast:
            e("L_combine:")
            e("  global_load_dwordx4 v[80:83], v1, s[72:73] sc1")
            e("  global_load_dwordx2 v[86:87], v1, s[72:73] offset:1024 sc1")
            for r in range(4): e("  v_mov_b32 v%d, v%d" % (76 + r, 4 + r))
            e("  v_mov_b32 v84, v8")
            e("  v_mov_b32 v85, v9")
            e("  s_lshl_b32 s36, s22, 9")
            e("  s_add_u32 s16, s16, s36")
            e("  s_addc_u32 s17, s17, 0")
            e("  v_lshrrev_b32 v2, 1, v1             ; lane*8")
            e("  s_waitcnt vmcnt(0)")
            if self.stamp: e("  s_memrealtime s[66:67]")
            e("  v_max_f32 v8, v84, v86")
            e("  v_sub_f32 v84, v84, v8")
            e("  v_sub_f32 v86, v86, v8")
            if self.kmode == 1:
                e("  v_mul_f32 v84, s34, v84"); e("  v_mul_f32 v86, s34, v86")
            e("  v_exp_f32 v84, v84")
            e("  v_exp_f32 v86, v86")
            e("  s_nop 0")
            e("  v_mul_f32 v85, v84, v85")
            e("  v_mul_f32 v87, v86, v87")
            e("  v_add_f32 v9, v85, v87")
            e("  v_rcp_f32 v9, v9")
            for r in range(4):
                e("  v_mul_f32 v%d, v84, v%d" % (76 + r, 76 + r))
                e("  v_mul_f32 v%d, v86, v%d" % (80 + r, 80 + r))
            for r in range(4):
                e("  v_add_f32 v%d, v%d, v%d" % (4 + r, 76 + r, 80 + r))
            for r in range(4): e("  v_mul_f32 v%d, v%d, v9" % (4 + r, 4 + r))
            e("  v_cvt_pk_bf16_f32 v4, v4, v5")
            e("  v_cvt_pk_bf16_f32 v5, v6, v7")
            e("  global_store_dwordx2 v2, v[4:5], s[16:17]")
        else:
            self.final_combine("sc1")
        e("L_end:")
        if self.stamp:
            e("  s_cmp_lg_u32 s3, 0")
            e("  s_cbranch_scc1 L_exit")
            e("  s_waitcnt vmcnt(0)")
            e("  s_memrealtime s[50:51]")
            e("  s_waitcnt lgkmcnt(0)")
            self.store_stamps(True)
        e("L_exit:")
        e("  s_endpgm")
        e('.section .rodata,"a"')
        e(".p2align 6")
        e(".amdhsa_kernel %s_kernel" % NAME)
        nv = self.nvgpr()
        e("  .amdhsa_next_free_vgpr %d" % nv)
        e("  .amdhsa_next_free_sgpr 80")
        e("  .amdhsa_accum_offset %d" % ((nv + 3) // 4 * 4))
        e("  .amdhsa_group_segment_fixed_size 0")
        e("  .amdhsa_kernarg_size 72")
        e("  .amdhsa_user_sgpr_count 2")
        e("  .amdhsa_user_sgpr_kernarg_segment_ptr 1")
        e("  .amdhsa_system_sgpr_workgroup_id_x 1")
        e(".end_amdhsa_kernel")
        return "\n".join(self.lines) + "\n"

    def store_stamps(self, final):
        e = self.e
        e("  s_mul_i32 s52, s2, %d" % self.W)
        e("  s_add_u32 s52, s52, s3")
        e("  s_lshl_b32 s52, s52, 6")
        e("  s_add_u32 s52, s52, 0x20000000")
        e("  s_add_u32 s54, s20, s52")
        e("  s_addc_u32 s55, s21, 0")
        if not final:
            e("  v_mov_b32 v60, s44"); e("  v_mov_b32 v61, s46"); e("  v_mov_b32 v62, s48"); e("  v_mov_b32 v63, s2")
            e("  v_mov_b32 v3, 0")
            e("  global_store_dwordx4 v3, v[60:63], s[54:55]")
            e("  v_mov_b32 v64, s58")
            e("  global_store_dword v3, v64, s[54:55] offset:48")
            for r in range(60, 68): e("  s_mov_b32 s%d, 0" % r)
        else:
            e("  v_mov_b32 v60, s50")
            e("  s_getreg_b32 s56, hwreg(HW_REG_XCC_ID)")
            e("  s_getreg_b32 s57, hwreg(HW_REG_HW_ID)")
            e("  v_mov_b32 v61, s56"); e("  v_mov_b32 v62, s57"); e("  v_mov_b32 v63, 0"); e("  v_mov_b32 v3, 0")
            e("  global_store_dwordx4 v3, v[60:63], s[54:55] offset:16")
            e("  v_mov_b32 v64, s60"); e("  v_mov_b32 v65, s62"); e("  v_mov_b32 v66, s64"); e("  v_mov_b32 v67, s66")
            e("  global_store_dwordx4 v3, v[64:67], s[54:55] offset:32")

    def merge(self, n, OB, MB, OD, MD):
        e = self.e
        e("  v_mov_b32 v%d, v%d" % (MD, MB))
        for w in range(1, n): e("  v_max_f32 v%d, v%d, v%d" % (MD, MD, MB + 2 * w))
        for w in range(n): e("  v_sub_f32 v%d, v%d, v%d" % (MB + 2 * w, MB + 2 * w, MD))
        if self.kmode == 1:
            for w in range(n): e("  v_mul_f32 v%d, s34, v%d" % (MB + 2 * w, MB + 2 * w))
        for w in range(n): e("  v_exp_f32 v%d, v%d" % (MB + 2 * w, MB + 2 * w))
        e("  s_nop 0")
        e("  v_mul_f32 v%d, v%d, v%d" % (MD + 1, MB, MB + 1))
        for w in range(1, n): e("  v_fmac_f32 v%d, v%d, v%d" % (MD + 1, MB + 2 * w, MB + 2 * w + 1))
        for r in range(4): e("  v_mul_f32 v%d, v%d, v%d" % (OD + r, MB, OB + r))
        for w in range(1, n):
            for r in range(4): e("  v_fmac_f32 v%d, v%d, v%d" % (OD + r, MB + 2 * w, OB + 4 * w + r))

    def final_combine(self, pol):
        e = self.e; S = self.S
        e("  s_mul_i32 s36, s22, %d" % (S * 2048))
        e("  s_add_u32 s40, s20, s36")
        e("  s_addc_u32 s41, s21, 0")
        OB = 76; MB = 76 + 4 * S
        for s in range(S):
            off = s * 2048
            if off + 1024 + 16 <= 4095:
                e("  global_load_dwordx4 v[%d:%d], v1, s[40:41] offset:%d %s" % (OB + 4 * s, OB + 4 * s + 3, off, pol))
                e("  global_load_dwordx2 v[%d:%d], v1, s[40:41] offset:%d %s" % (MB + 2 * s, MB + 2 * s + 1, off + 1024, pol))
            else:
                e("  v_add_u32 v3, %d, v1" % off)
                e("  global_load_dwordx4 v[%d:%d], v3, s[40:41] %s" % (OB + 4 * s, OB + 4 * s + 3, pol))
                e("  global_load_dwordx2 v[%d:%d], v3, s[40:41] offset:1024 %s" % (MB + 2 * s, MB + 2 * s + 1, pol))
        e("  s_waitcnt vmcnt(0)")
        if self.stamp: e("  s_memrealtime s[66:67]")
        self.merge(S, OB, MB, 4, 8)
        e("  v_rcp_f32 v9, v9")
        e("  s_nop 0")
        for r in range(4): e("  v_mul_f32 v%d, v%d, v9" % (4 + r, 4 + r))
        e("  v_cvt_pk_bf16_f32 v4, v4, v5")
        e("  v_cvt_pk_bf16_f32 v5, v6, v7")
        e("  s_lshl_b32 s36, s22, 9")
        e("  s_add_u32 s16, s16, s36")
        e("  s_addc_u32 s17, s17, 0")
        e("  v_lshrrev_b32 v2, 1, v1             ; lane*8")
        e("  global_store_dwordx2 v2, v[4:5], s[16:17]")

if __name__ == "__main__":
    ap = argparse.ArgumentParser()
    ap.add_argument("-o", default="cdna_kernels/%s.s" % NAME)
    ap.add_argument("--S", type=int, default=2)
    ap.add_argument("--W", type=int, default=4)
    ap.add_argument("--R", type=int, default=8)
    ap.add_argument("--pol", default="nt")
    ap.add_argument("--map", type=int, default=0)
    ap.add_argument("--stamp", action="store_true")
    ap.add_argument("--ldsmin", type=int, default=98304)
    ap.add_argument("--amap", default="")
    ap.add_argument("--kmode", type=int, default=1)
    ap.add_argument("--kpol", default=None)
    ap.add_argument("--wv", type=int, default=63)
    ap.add_argument("--fine", type=int, default=0)
    ap.add_argument("--boost", default="")
    ap.add_argument("--kfine", type=int, default=0)
    ap.add_argument("--trace", action="store_true")
    ap.add_argument("--fast", action="store_true")
    a = ap.parse_args()
    g = Gen2(S=a.S, W=a.W, R=a.R, pol=a.pol, mapmode=a.map, stamp=a.stamp, ldsmin=a.ldsmin, amap=parse_amap(a.amap), kmode=a.kmode, kpol=a.kpol, wv=a.wv, fine=a.fine, boost=tuple(int(x) for x in a.boost.split(',')) if a.boost else None, kfine=a.kfine, trace=a.trace, fast=a.fast)
    open(a.o, "w").write(g.build())
    print("wrote", a.o, "vgprs", g.nvgpr(), "lds", g.lds)
```

```python
import struct, sys, math, argparse
sys.path.insert(0, "gen")
from gen import NAME, HEADER, f32bits, hexf, C_SCALE, parse_amap

class Gen2:
    V_KOFF, V_VOFF = 1, 2
    V_Q = 4; V_MASK = 20; V_O = 24; V_SA = 28; V_P = 32; V_B = 36
    V_M, V_NMC, V_L, V_TM, V_T1, V_ST, V_LA, V_LANE = 52, 53, 54, 55, 56, 57, 58, 59
    V_VT = 64; V_SB = 68; V_VR = 72; RING = 76
    V_D = 36
    V_C = 60

    def __init__(self, S=2, W=4, R=8, pol="nt", mapmode=0, stamp=False, ldsmin=98304, amap=None, kmode=1, kpol=None, wv=63, fine=0, boost=None, kboost=None, kfine=0, trace=False, fast=False, early=False, outpol='', grp=-1, wpat=None):
        self.wpat = wpat
        self.grp = grp
        self.early = early
        self.outpol = outpol
        self.fast = fast
        self.trace = trace
        self.kfine = kfine
        self.boost = boost
        self.kboost = kboost
        self.depth = fine
        self.fine = fine
        self.wv = wv
        self.kmode = kmode
        self.kpol = pol if kpol is None else kpol
        self.S, self.W, self.R, self.pol, self.mapmode, self.stamp = S, W, R, pol, mapmode, stamp
        self.NWG = 128 * S
        self.KEYS_WG = 8192 // S
        self.WGBYTES = self.KEYS_WG * 256
        self.NT = self.KEYS_WG // 16 // W
        assert self.NT % R == 0 and R % 2 == 0
        lw = int(math.log2(W))
        if amap is None:
            amap = dict(gs=1024, ws=4096, fields=[(0, int(math.log2(self.NT)), 12 + lw)])
        self.amap = amap
        self.SC_BYTES = W * self.NT * 128
        self.EP = self.SC_BYTES
        self.lds = max(self.EP + W * 1024 + W * 16, ldsmin)
        self.lines = []

    def e(self, s): self.lines.append(s)
    def slot(self, j): return self.RING + 16 * j
    def nvgpr(self): return max(self.RING + 16 * self.R, 76 + 6 * self.W + 2, 76 + 6 * self.S + 4)

    def calc_off(self):
        first = True
        for (lo, n, pos) in self.amap["fields"]:
            dst = "s68" if first else "s71"
            self.e("  s_bfe_u32 %s, s70, 0x%x" % (dst, (n << 16) | lo))
            if pos: self.e("  s_lshl_b32 %s, %s, %d" % (dst, dst, pos))
            if not first: self.e("  s_or_b32 s68, s68, s71")
            first = False
        self.e("  s_add_u32 s70, s70, 1")

    def issue_k(self, j):
        if self.fine:
            for r in range(4): self.issue_k1(j, r)
            return
        k = self.slot(j)
        gs = self.amap["gs"]
        for t in range(4):
            if self.kmode == 1:
                self.e("  buffer_load_dwordx4 v[%d:%d], v%d, s[24:27], s68 offen offset:%d %s" %
                   (k + 4 * t, k + 4 * t + 3, self.V_KOFF, t * 64, self.kpol))
            else:
                assert gs * 3 <= 3072
                self.e("  buffer_load_dwordx4 v[%d:%d], v%d, s[24:27], s68 offen offset:%d %s" %
                   (k + 4 * t, k + 4 * t + 3, self.V_KOFF, t * gs, self.kpol))

    def issue_v(self, j):
        v = self.slot(j); gs = self.amap["gs"]
        for r in range(4):
            if gs * 3 <= 3072:
                self.e("  buffer_load_dwordx4 v[%d:%d], v%d, s[28:31], s68 offen offset:%d %s" %
                       (v + 4 * r, v + 4 * r + 3, self.V_VOFF, r * gs, self.pol))
            else:
                self.e("  buffer_load_dwordx4 v[%d:%d], v%d, s[28:31], s68 offen %s" %
                       (v + 4 * r, v + 4 * r + 3, self.V_VR + r, self.pol))

    def issue_k1(self, j, r):
        k = self.slot(j); gs = self.amap["gs"]
        if gs * 3 <= 3072:
            self.e("  buffer_load_dwordx4 v[%d:%d], v%d, s[24:27], s68 offen offset:%d %s" %
               (k + 4 * r, k + 4 * r + 3, self.V_KOFF, r * gs, self.kpol))
        else:
            self.e("  buffer_load_dwordx4 v[%d:%d], v%d, s[24:27], s68 offen %s" %
               (k + 4 * r, k + 4 * r + 3, 16 + r, self.kpol))
    def issue_v1(self, j, r):
        v = self.slot(j); gs = self.amap["gs"]
        if gs * 3 <= 3072:
            self.e("  buffer_load_dwordx4 v[%d:%d], v%d, s[28:31], s68 offen offset:%d %s" %
               (v + 4 * r, v + 4 * r + 3, self.V_VOFF, r * gs, self.pol))
        else:
            self.e("  buffer_load_dwordx4 v[%d:%d], v%d, s[28:31], s68 offen %s" %
               (v + 4 * r, v + 4 * r + 3, self.V_VR + r, self.pol))

    def qk(self, k, s):
        q = self.V_Q
        for t in range(4):
            c = "0" if t == 0 else "v[%d:%d]" % (s, s + 3)
            self.e("  v_mfma_f32_16x16x32_bf16 v[%d:%d], v[%d:%d], v[%d:%d], %s" %
                   (s, s + 3, k + 4 * t, k + 4 * t + 3, q + 4 * t, q + 4 * t + 3, c))

    def ktile(self, j, nxt):
        R = self.R
        s = self.V_SA if j % 2 == 0 else self.V_SB
        tm = self.V_TM
        if self.fine:
            assert self.kmode == 2
            k = self.slot(j); q = self.V_Q; d = self.V_D
            self.calc_off()
            for r in range(4):
                self.e("  s_waitcnt vmcnt(%d)" % min(self.depth - 1 + self.wd(r), 4 * R - 1))
                self.e("  v_mfma_f32_16x16x32_bf16 v[%d:%d], v[%d:%d], v[%d:%d], 0" %
                       (d + 4 * r, d + 4 * r + 3, k + 4 * r, k + 4 * r + 3, q, q + 3))
                if nxt == 'k': self.issue_k1(j, r)
                else: self.issue_v1(j, r)
            self.e("  s_nop 0")
            for r in range(4):
                if r == 3: self.e("  s_nop 0")
                self.reduce_dpp(self.V_D + 4 * r, s + r)
            self.e("  s_nop 0")
            self.e("  v_max3_f32 v%d, v%d, v%d, v%d" % (tm, s, s + 1, tm))
            self.e("  v_max3_f32 v%d, v%d, v%d, v%d" % (tm, s + 2, s + 3, tm))
            self.e("  ds_write_b128 v%d, v[%d:%d] offset:%d" % (self.V_LA, s, s + 3, j * 128))
            self.trace_pt(12)
            return
        self.e("  s_waitcnt vmcnt(%d)" % min(self.wv, 4 * (R - 1)))
        if self.kmode == 1:
            self.qk(self.slot(j), s)
        else:
            k = self.slot(j); q = self.V_Q; d = self.V_D
            for r in range(4):
                self.e("  v_mfma_f32_16x16x32_bf16 v[%d:%d], v[%d:%d], v[%d:%d], 0" %
                       (d + 4 * r, d + 4 * r + 3, k + 4 * r, k + 4 * r + 3, q, q + 3))
        self.calc_off()
        if nxt == 'k': self.issue_k(j)
        else: self.issue_v(j)
        self.e("  s_nop 1")
        if self.kmode == 2:
            for r in range(4):
                self.reduce_dpp(self.V_D + 4 * r, s + r)
            self.e("  s_nop 0")
        self.e("  v_max3_f32 v%d, v%d, v%d, v%d" % (tm, s, s + 1, tm))
        self.e("  v_max3_f32 v%d, v%d, v%d, v%d" % (tm, s + 2, s + 3, tm))
        self.e("  ds_write_b128 v%d, v[%d:%d] offset:%d" % (self.V_LA, s, s + 3, j * 128))

    def wd(self, r):
        if self.wpat is None or self.depth != self.fine: return 0
        return self.wpat[r]

    def trace_pt(self, vreg):
        if not self.trace: return
        self.e("  s_memrealtime s[74:75]")
        self.e("  s_waitcnt lgkmcnt(0)")
        self.e("  s_mov_b32 m0, s72")
        self.e("  v_writelane_b32 v%d, s74, m0" % vreg)
        self.e("  s_add_u32 s72, s72, 1")

    def reduce_dpp(self, d, dst):
        self.e("  v_mul_f32_dpp v%d, v%d, v%d quad_perm:[0,0,0,0] row_mask:0xf bank_mask:0xf" % (dst, d, self.V_C))
        for s in range(1, 4):
            self.e("  v_fmac_f32_dpp v%d, v%d, v%d quad_perm:[%d,%d,%d,%d] row_mask:0xf bank_mask:0xf" %
                   (dst, d + s, self.V_C, s, s, s, s))

    def vtile(self, j, nxt, wait, last):
        s = self.V_SA if j % 2 == 0 else self.V_SB
        sn = self.V_SB if j % 2 == 0 else self.V_SA
        p, b, o, mk, l, nmc = self.V_P, self.V_B, self.V_O, self.V_MASK, self.V_L, self.V_NMC
        v = self.slot(j)
        if not last:
            self.e("  ds_read_b128 v[%d:%d], v%d offset:%d" % (sn, sn + 3, self.V_LA, (j + 1) * 128))
            self.e("  s_waitcnt lgkmcnt(1)")
        else:
            self.e("  s_waitcnt lgkmcnt(0)")
        for r in range(4):
            if self.kmode == 1:
                self.e("  v_fma_f32 v%d, v%d, s34, v%d" % (p + r, s + r, nmc))
            else:
                self.e("  v_add_f32 v%d, v%d, v%d" % (p + r, s + r, nmc))
        for r in range(4):
            self.e("  v_exp_f32 v%d, v%d" % (p + r, p + r))
        self.e("  s_nop 0")
        for r in range(4):
            self.e("  v_add_f32 v%d, v%d, v%d" % (l, l, p + r))
        for r in range(4):
            self.e("  v_cvt_pk_bf16_f32 v%d, v%d, v%d" % (p + r, p + r, p + r))
        for r in range(4):
            for rr in range(4):
                self.e("  v_and_b32 v%d, v%d, v%d" % (b + 4 * r + rr, p + r, mk + rr))
        if self.fine:
            if nxt: self.calc_off()
            for r in range(4):
                w = (4 * self.R - 1) if nxt else (wait + 3 - r)
                self.e("  s_waitcnt vmcnt(%d)" % min(self.depth - 1 + self.wd(r), w))
                self.e("  v_mfma_f32_16x16x32_bf16 v[%d:%d], v[%d:%d], v[%d:%d], v[%d:%d]" %
                       (o, o + 3, v + 4 * r, v + 4 * r + 3, b + 4 * r, b + 4 * r + 3, o, o + 3))
                if nxt: self.issue_v1(j, r)
            self.trace_pt(13)
            return
        self.e("  s_waitcnt vmcnt(%d)" % min(self.wv, wait))
        for r in range(4):
            self.e("  v_mfma_f32_16x16x32_bf16 v[%d:%d], v[%d:%d], v[%d:%d], v[%d:%d]" %
                   (o, o + 3, v + 4 * r, v + 4 * r + 3, b + 4 * r, b + 4 * r + 3, o, o + 3))
        if nxt:
            self.calc_off()
            self.issue_v(j)

    def build(self):
        S, W, R, NT = self.S, self.W, self.R, self.NT
        e = self.e
        lane = self.V_LANE
        e(HEADER.rstrip("\n"))
        e("; @launch grid=(%d,1,1) block=(%d,1,1) lds=%d" % (self.NWG, 64 * W, self.lds))
        e('.amdgcn_target "amdgcn-amd-amdhsa--gfx950"')
        e(".text")
        e(".globl %s_kernel" % NAME)
        e(".p2align 8")
        e(".type %s_kernel,@function" % NAME)
        e("%s_kernel:" % NAME)
        e("  s_cmp_ge_u32 s2, %d" % self.NWG)
        e("  s_cbranch_scc1 L_exit")
        if self.stamp: e("  s_memrealtime s[44:45]")
        e("  s_load_dwordx16 s[4:19], s[0:1], 0")
        e("  s_load_dwordx2 s[20:21], s[0:1], 64")
        e("  v_and_b32 v%d, 63, v0" % lane)
        e("  v_lshrrev_b32 v3, 6, v0")
        e("  s_nop 0")
        e("  v_readfirstlane_b32 s3, v3")
        lg = int(math.log2(S))
        if self.mapmode == 0:
            e("  s_and_b32 s22, s2, 127"); e("  s_lshr_b32 s23, s2, 7")
        elif self.mapmode == 1:
            e("  s_lshr_b32 s22, s2, %d" % lg); e("  s_and_b32 s23, s2, %d" % (S - 1))
        elif self.mapmode == 2:
            e("  s_and_b32 s22, s2, 7"); e("  s_lshl_b32 s22, s22, 4")
            e("  s_lshr_b32 s23, s2, %d" % (3 + lg)); e("  s_add_u32 s22, s22, s23")
            e("  s_lshr_b32 s23, s2, 3"); e("  s_and_b32 s23, s23, %d" % (S - 1))
        elif self.mapmode == 3:
            e("  s_lshr_b32 s23, s2, %d" % (3 + lg))
            e("  s_add_u32 s22, s2, s23"); e("  s_and_b32 s22, s22, 7")
            e("  s_lshl_b32 s23, s23, 3"); e("  s_add_u32 s22, s22, s23")
            e("  s_lshr_b32 s23, s2, 3"); e("  s_and_b32 s23, s23, %d" % (S - 1))
        e("  v_lshrrev_b32 v60, 4, v%d            ; g" % lane)
        e("  v_and_b32 v61, 15, v%d               ; i / n" % lane)
        e("  v_lshlrev_b32 v%d, 4, v%d" % (self.V_VOFF, lane))
        if self.kmode == 1:
            e("  v_and_b32 v62, 3, v61")
            e("  v_mul_u32_u24 v62, %d, v62          ; (i&3)*gs" % self.amap["gs"])
            e("  v_lshrrev_b32 v63, 2, v61")
            e("  v_lshlrev_b32 v63, 8, v63           ; (i>>2)*256")
            e("  v_add_u32 v62, v62, v63")
            e("  v_lshlrev_b32 v63, 4, v60           ; g*16")
        else:
            e("  v_lshrrev_b32 v62, 2, v61")
            e("  v_lshlrev_b32 v62, 8, v62           ; kk*256")
            e("  v_and_b32 v63, 3, v61               ; s")
            e("  v_lshlrev_b32 v63, 4, v63           ; s*16")
            e("  v_lshl_add_u32 v63, v60, 6, v63     ; g*64 + s*16")
        e("  v_add_u32 v%d, v62, v63" % self.V_KOFF)
        e("  v_lshrrev_b32 v62, 3, v61")
        e("  v_lshlrev_b32 v62, 8, v62")
        e("  v_add_u32 v3, v62, v63              ; Q voffset")
        for r in range(4):
            e("  v_add_u32 v%d, %d, v%d" % (self.V_VR + r, r * self.amap["gs"], self.V_VOFF))
        if self.kmode == 2:
            for r in range(4):
                e("  v_add_u32 v%d, %d, v%d" % (16 + r, r * self.amap["gs"], self.V_KOFF))
        e("  v_lshrrev_b32 v62, 3, v61           ; h")
        e("  v_lshl_add_u32 v62, v60, 1, v62     ; g*2+h")
        e("  v_lshlrev_b32 v62, 4, v62")
        e("  s_mul_i32 s36, s3, %d" % (NT * 128))
        e("  v_add_u32 v%d, s36, v62" % self.V_LA)
        e("  v_and_b32 v62, 1, v61")
        e("  v_cmp_eq_u32 vcc, 1, v62")
        e("  v_mov_b32 v62, 0xffff")
        e("  v_mov_b32 v63, 0xffff0000")
        e("  v_cndmask_b32 v62, v62, v63, vcc")
        e("  v_bfe_u32 v63, v61, 1, 2             ; (n&7)>>1")
        for rr in range(4):
            e("  v_cmp_eq_u32 vcc, %d, v63" % rr)
            e("  s_nop 1")
            e("  v_cndmask_b32 v%d, 0, v62, vcc" % (self.V_MASK + rr))
        e("  s_mov_b32 s34, %s" % hexf(C_SCALE))
        e("  s_mov_b32 s35, %s" % hexf(-C_SCALE))
        e("  v_mov_b32 v%d, 0xff800000" % self.V_TM)
        e("  v_mov_b32 v%d, 0xff800000" % self.V_ST)
        for r in range(4):
            e("  v_mov_b32 v%d, 0" % (self.V_VT + r))
        e("  s_waitcnt lgkmcnt(0)")
        e("  s_lshl_b32 s36, s22, 9")
        e("  s_add_u32 s4, s4, s36")
        e("  s_addc_u32 s5, s5, 0")
        for t in range(4 if self.kmode == 1 else 1):
            e("  global_load_dwordx4 v[%d:%d], v3, s[4:5] offset:%d" % (self.V_Q + 4 * t, self.V_Q + 4 * t + 3, t * 64))
        if self.grp >= 0:
            G = self.grp
            e("  s_lshr_b32 s36, s2, %d" % (G + 1))
            e("  s_lshl_b32 s36, s36, %d" % (21 + G))
            e("  s_and_b32 s37, s2, %d" % ((1 << (G + 1)) - 1))
            e("  s_mul_i32 s37, s37, %d" % self.amap["ss"])
            e("  s_add_u32 s36, s36, s37")
        else:
            e("  s_lshl_b32 s36, s22, 21")
            e("  s_mul_i32 s37, s23, %d" % self.amap.get("ss", self.WGBYTES))
            e("  s_add_u32 s36, s36, s37")
        e("  s_mul_i32 s37, s3, %d" % self.amap["ws"])
        e("  s_add_u32 s36, s36, s37")
        e("  s_add_u32 s24, s6, s36")
        e("  s_addc_u32 s25, s7, 0")
        e("  s_and_b32 s25, s25, 0xffff")
        if self.grp >= 0:
            e("  s_mov_b32 s26, %d" % (1 << (21 + self.grp)))
            e("  s_and_b32 s27, s2, %d" % ((1 << (self.grp + 1)) - 1))
            e("  s_mul_i32 s27, s27, %d" % self.amap["ss"])
            e("  s_sub_u32 s26, s26, s27")
            e("  s_sub_u32 s26, s26, s37")
        elif "ss" in self.amap:
            e("  s_mov_b32 s26, 0x200000")
            e("  s_mul_i32 s27, s23, %d" % self.amap["ss"])
            e("  s_sub_u32 s26, s26, s27")
            e("  s_sub_u32 s26, s26, s37")
        else:
            e("  s_sub_u32 s26, %d, s37" % self.WGBYTES)
        e("  s_mov_b32 s27, 0x20000")
        e("  s_add_u32 s28, s8, s36")
        e("  s_addc_u32 s29, s9, 0")
        e("  s_and_b32 s29, s29, 0xffff")
        e("  s_mov_b32 s30, s26")
        e("  s_mov_b32 s31, 0x20000")
        e("  s_or_b32 s38, s23, s3")
        e("  s_cmp_lg_u32 s38, 0")
        e("  s_cbranch_scc1 L_notree_issue")
        e("  s_lshl_b32 s36, s22, 8              ; pair*256")
        e("  s_add_u32 s10, s10, s36")
        e("  s_addc_u32 s11, s11, 0")
        e("  s_add_u32 s12, s12, s36")
        e("  s_addc_u32 s13, s13, 0")
        if self.kmode == 1:
            e("  v_lshlrev_b32 v62, 4, v60           ; g*16")
            for t in range(4):
                e("  global_load_dwordx4 v[%d:%d], v62, s[10:11] offset:%d" % (self.V_B + 4 * t, self.V_B + 4 * t + 3, t * 64))
        else:
            e("  v_and_b32 v63, 3, v61")
            e("  v_lshlrev_b32 v63, 4, v63")
            e("  v_lshl_add_u32 v62, v60, 6, v63     ; g*64 + s*16")
            e("  global_load_dwordx4 v[%d:%d], v62, s[10:11]" % (self.V_B + 4, self.V_B + 7))
        e("  v_and_b32 v63, 7, v61")
        e("  v_lshlrev_b32 v63, 1, v63")
        e("  v_lshl_add_u32 v63, v60, 6, v63")
        for r in range(4):
            e("  global_load_ushort v%d, v63, s[12:13] offset:%d" % (self.V_VT + r, r * 16))
        e("  s_lshr_b32 s36, s22, 4")
        e("  s_lshl_b32 s37, s36, 1")
        e("  s_and_b32 s37, s37, 0xfffffffc")
        e("  s_load_dword s39, s[14:15], s37")
        e("L_notree_issue:")
        e("  s_mov_b32 s70, 0")
        for j in range(R):
            self.calc_off()
            self.issue_k(j)
        e("  s_cmp_lg_u32 s38, 0")
        e("  s_cbranch_scc1 L_notree")
        e("  s_waitcnt lgkmcnt(0)")
        e("  s_and_b32 s36, s36, 1")
        e("  s_lshl_b32 s36, s36, 4")
        e("  s_lshr_b32 s39, s39, s36")
        e("  s_lshl_b32 s39, s39, 16")
        e("  s_waitcnt vmcnt(%d)" % (4 * R))
        if self.kmode == 1:
            self.qk(self.V_B, self.V_SA)
            e("  s_nop 7")
            e("  v_sub_f32 v62, 1.0, s39")
            e("  v_mul_f32 v62, %s, v62" % hexf(-1e9 * math.sqrt(128.0)))
            e("  v_add_f32 v%d, v%d, v62" % (self.V_ST, self.V_SA))
        else:
            e("  v_mov_b32 v%d, s34" % self.V_C)
            e("  v_mfma_f32_16x16x32_bf16 v[%d:%d], v[%d:%d], v[%d:%d], 0" % (self.V_D, self.V_D + 3, self.V_B + 4, self.V_B + 7, self.V_Q, self.V_Q + 3))
            e("  s_nop 7")
            self.reduce_dpp(self.V_D, self.V_SA)
            e("  v_sub_f32 v62, 1.0, s39")
            e("  v_mul_f32 v62, %s, v62" % hexf(-1e9 * math.log2(math.e)))
            e("  v_add_f32 v%d, v%d, v62" % (self.V_ST, self.V_SA))
        for r in range(4):
            e("  v_lshlrev_b32 v%d, 16, v%d" % (self.V_VT + r, self.V_VT + r))
        e("L_notree:")
        if self.kmode == 2:
            e("  v_mov_b32 v%d, s34" % self.V_C)
        if self.stamp:
            e("  s_waitcnt vmcnt(%d)" % (4 * (R - 1)))
            e("  s_memrealtime s[46:47]")
            e("  s_waitcnt lgkmcnt(0)")
        if self.trace: e("  s_mov_b32 s72, 0")
        if self.kfine: self.depth = self.kfine
        n1 = NT // R - 1
        if n1 > 0:
            e("  s_mov_b32 s33, %d" % n1)
            e("L_p1:")
            for j in range(R): self.ktile(j, 'k')
            e("  v_add_u32 v%d, %d, v%d" % (self.V_LA, R * 128, self.V_LA))
            e("  s_sub_u32 s33, s33, 1")
            e("  s_cmp_lg_u32 s33, 0")
            e("  s_cbranch_scc1 L_p1")
        e("  s_mov_b32 s70, 0")
        for j in range(R): self.ktile(j, 'v')
        if self.trace: e("  s_mov_b32 s72, 0")
        if self.stamp:
            e("  s_memrealtime s[58:59]")
        tm, t1, m = self.V_TM, self.V_T1, self.V_M
        e("  v_subrev_u32 v%d, %d, v%d" % (self.V_LA, (NT - R) * 128, self.V_LA))
        e("  v_mov_b32 v%d, v%d" % (t1, tm))
        e("  s_nop 1")
        e("  v_permlane16_swap_b32 v%d, v%d" % (tm, t1))
        e("  s_nop 1")
        e("  v_max_f32 v%d, v%d, v%d" % (tm, tm, t1))
        e("  v_mov_b32 v%d, v%d" % (t1, tm))
        e("  s_nop 1")
        e("  v_permlane32_swap_b32 v%d, v%d" % (tm, t1))
        e("  s_nop 1")
        e("  v_max_f32 v%d, v%d, v%d" % (tm, tm, t1))
        e("  v_max_f32 v%d, v%d, v%d" % (m, tm, self.V_ST))
        if self.kmode == 1:
            e("  v_mul_f32 v%d, s35, v%d" % (self.V_NMC, m))
            e("  v_fma_f32 v%d, v%d, s34, v%d" % (t1, self.V_ST, self.V_NMC))
        else:
            e("  v_sub_f32 v%d, 0, v%d" % (self.V_NMC, m))
            e("  v_add_f32 v%d, v%d, v%d" % (t1, self.V_ST, self.V_NMC))
        e("  v_exp_f32 v%d, v%d" % (t1, t1))
        e("  v_cmp_gt_u32 vcc, 16, v%d" % lane)
        e("  s_nop 1")
        e("  v_cndmask_b32 v%d, 0, v%d, vcc" % (self.V_L, t1))
        for r in range(4):
            e("  v_mul_f32 v%d, v%d, v%d" % (self.V_O + r, t1, self.V_VT + r))
        e("  s_waitcnt lgkmcnt(0)")
        e("  ds_read_b128 v[%d:%d], v%d" % (self.V_SA, self.V_SA + 3, self.V_LA))
        nb = (self.boost[0] - 1) if self.boost else 0
        for (cnt, dep, lab) in ((n1 - nb, self.fine, "L_p2"), (nb, self.boost[1] if self.boost else 0, "L_p2b")):
            if cnt <= 0: continue
            self.depth = dep
            e("  s_mov_b32 s33, %d" % cnt)
            e("%s:" % lab)
            for j in range(R): self.vtile(j, True, 4 * (R - 1), False)
            e("  v_add_u32 v%d, %d, v%d" % (self.V_LA, R * 128, self.V_LA))
            e("  s_sub_u32 s33, s33, 1")
            e("  s_cmp_lg_u32 s33, 0")
            e("  s_cbranch_scc1 %s" % lab)
        self.depth = self.boost[1] if self.boost else self.fine
        for j in range(R): self.vtile(j, False, 4 * (R - 1 - j), j == R - 1)
        if self.stamp:
            e("  s_memrealtime s[48:49]")
            e("  s_waitcnt lgkmcnt(0)")
            self.store_stamps(False)
        if self.trace:
            e("  s_mul_i32 s52, s2, %d" % self.W)
            e("  s_add_u32 s52, s52, s3")
            e("  s_lshl_b32 s52, s52, 9")
            e("  s_add_u32 s52, s52, 0x20100000")
            e("  s_add_u32 s54, s20, s52")
            e("  s_addc_u32 s55, s21, 0")
            e("  v_lshlrev_b32 v14, 2, v%d" % lane)
            e("  global_store_dword v14, v12, s[54:55]")
            e("  global_store_dword v14, v13, s[54:55] offset:256")
        if self.fast and self.early:
            e("  s_lshr_b32 s36, s22, 1")
            e("  s_lshl_b32 s36, s36, 2")
            e("  v_mov_b32 v12, s36")
            e("  v_mov_b32 v13, 0")
            e("  s_cmp_lg_u32 s3, 0")
            e("  s_cbranch_scc1 L_noearly")
            e("  s_mov_b64 exec, 1")
            e("  global_atomic_add v14, v12, v13, s[18:19] sc0")
            e("  s_mov_b64 exec, -1")
            e("L_noearly:")
        l = self.V_L
        e("  v_mov_b32 v%d, v%d" % (t1, l))
        e("  s_nop 1")
        e("  v_permlane16_swap_b32 v%d, v%d" % (l, t1))
        e("  s_nop 1")
        e("  v_add_f32 v%d, v%d, v%d" % (l, l, t1))
        e("  v_mov_b32 v%d, v%d" % (t1, l))
        e("  s_nop 1")
        e("  v_permlane32_swap_b32 v%d, v%d" % (l, t1))
        e("  s_nop 1")
        e("  v_add_f32 v%d, v%d, v%d" % (l, l, t1))
        e("  v_lshrrev_b32 v60, 4, v%d" % lane)
        e("  v_and_b32 v61, 15, v%d" % lane)
        e("  v_lshrrev_b32 v62, 3, v61")
        e("  v_lshlrev_b32 v62, 9, v62")
        e("  v_lshl_add_u32 v62, v60, 7, v62")
        e("  v_and_b32 v63, 7, v61")
        e("  v_lshl_add_u32 v62, v63, 2, v62")
        e("  s_lshl_b32 s36, s3, 10")
        e("  s_add_u32 s36, s36, %d" % self.EP)
        e("  v_add_u32 v62, s36, v62")
        for r in range(4):
            e("  ds_write_b32 v62, v%d offset:%d" % (self.V_O + r, r * 32))
        e("  v_lshrrev_b32 v63, 3, v61")
        e("  v_lshlrev_b32 v63, 3, v63")
        e("  s_lshl_b32 s36, s3, 4")
        e("  s_add_u32 s36, s36, %d" % (self.EP + W * 1024))
        e("  v_add_u32 v63, s36, v63")
        e("  v_mov_b32 v60, v%d" % m)
        e("  v_mov_b32 v61, v%d" % l)
        e("  ds_write_b64 v63, v[60:61]")
        if self.fast and self.early:
            e("  s_waitcnt lgkmcnt(0)")
        else:
            e("  s_waitcnt vmcnt(0) lgkmcnt(0)")
        e("  s_barrier")
        e("  s_cmp_lg_u32 s3, 0")
        e("  s_cbranch_scc1 L_end")
        if self.stamp: e("  s_memrealtime s[60:61]")
        e("  s_lshr_b32 s36, s22, 1")
        e("  s_lshl_b32 s36, s36, 2")
        e("  s_and_b32 s37, s22, 1")
        e("  s_lshl_b32 s37, s37, 4")
        e("  v_mov_b32 v12, s36")
        if self.fast and not self.early:
            e("  v_mov_b32 v13, 0")
            e("  s_mov_b64 exec, 1")
            e("  global_atomic_add v14, v12, v13, s[18:19] sc0")
            e("  s_mov_b64 exec, -1")
        e("  v_lshlrev_b32 v1, 4, v%d             ; lane*16" % lane)
        e("  v_lshrrev_b32 v2, 5, v%d" % lane)
        e("  v_lshlrev_b32 v2, 3, v2              ; h*8")
        e("  v_add_u32 v2, %d, v2" % (self.EP + W * 1024))
        e("  v_add_u32 v3, %d, v1" % self.EP)
        OB, MB = 76, 76 + 4 * W
        for w in range(W):
            e("  ds_read_b64 v[%d:%d], v2 offset:%d" % (MB + 2 * w, MB + 2 * w + 1, w * 16))
        for w in range(W):
            e("  ds_read_b128 v[%d:%d], v3 offset:%d" % (OB + 4 * w, OB + 4 * w + 3, w * 1024))
        e("  s_mul_i32 s42, s22, %d" % S)
        e("  s_add_u32 s43, s42, s23")
        e("  s_lshl_b32 s43, s43, 11")
        e("  s_add_u32 s40, s20, s43")
        e("  s_addc_u32 s41, s21, 0")
        if self.fast:
            assert S == 2
            e("  s_xor_b32 s43, s43, 2048")
            e("  s_add_u32 s72, s20, s43")
            e("  s_addc_u32 s73, s21, 0")
        e("  s_waitcnt lgkmcnt(0)")
        self.merge(W, OB, MB, 4, 8)
        e("  v_mov_b32 v10, 0")
        e("  v_mov_b32 v11, 0")
        e("  global_store_dwordx4 v1, v[4:7], s[40:41] sc1")
        e("  global_store_dwordx4 v1, v[8:11], s[40:41] offset:1024 sc1")
        if self.fast:
            e("  s_waitcnt vmcnt(2)")
            e("  v_readfirstlane_b32 s43, v14")
            e("  s_nop 3")
            e("  s_lshr_b32 s43, s43, s37")
            e("  s_and_b32 s43, s43, 0xff")
            e("  s_cmp_lg_u32 s43, 0")
            e("  s_cbranch_scc1 L_combine")
        e("  s_waitcnt vmcnt(0)")
        if self.stamp: e("  s_memrealtime s[62:63]")
        e("  s_lshl_b32 s42, 1, s37")
        e("  v_mov_b32 v13, s42")
        e("  s_mov_b64 exec, 1")
        e("  global_atomic_add v14, v12, v13, s[18:19] sc0")
        e("  s_waitcnt vmcnt(0)")
        if self.stamp: e("  s_memrealtime s[64:65]")
        e("  v_readfirstlane_b32 s43, v14")
        e("  s_mov_b64 exec, -1")
        e("  s_nop 3")
        e("  s_lshr_b32 s43, s43, s37")
        e("  s_and_b32 s43, s43, 0xff")
        e("  s_cmp_lg_u32 s43, %d" % (S - 1))
        e("  s_cbranch_scc1 L_end")
        if self.fast:
            e("L_combine:")
            e("  global_load_dwordx4 v[80:83], v1, s[72:73] sc1")
            e("  global_load_dwordx2 v[86:87], v1, s[72:73] offset:1024 sc1")
            for r in range(4): e("  v_mov_b32 v%d, v%d" % (76 + r, 4 + r))
            e("  v_mov_b32 v84, v8")
            e("  v_mov_b32 v85, v9")
            e("  s_lshl_b32 s36, s22, 9")
            e("  s_add_u32 s16, s16, s36")
            e("  s_addc_u32 s17, s17, 0")
            e("  v_lshrrev_b32 v2, 1, v1             ; lane*8")
            e("  s_waitcnt vmcnt(0)")
            if self.stamp: e("  s_memrealtime s[66:67]")
            e("  v_max_f32 v8, v84, v86")
            e("  v_sub_f32 v84, v84, v8")
            e("  v_sub_f32 v86, v86, v8")
            if self.kmode == 1:
                e("  v_mul_f32 v84, s34, v84"); e("  v_mul_f32 v86, s34, v86")
            e("  v_exp_f32 v84, v84")
            e("  v_exp_f32 v86, v86")
            e("  s_nop 0")
            e("  v_mul_f32 v85, v84, v85")
            e("  v_mul_f32 v87, v86, v87")
            e("  v_add_f32 v9, v85, v87")
            e("  v_rcp_f32 v9, v9")
            for r in range(4):
                e("  v_mul_f32 v%d, v84, v%d" % (76 + r, 76 + r))
                e("  v_mul_f32 v%d, v86, v%d" % (80 + r, 80 + r))
            for r in range(4):
                e("  v_add_f32 v%d, v%d, v%d" % (4 + r, 76 + r, 80 + r))
            for r in range(4): e("  v_mul_f32 v%d, v%d, v9" % (4 + r, 4 + r))
            e("  v_cvt_pk_bf16_f32 v4, v4, v5")
            e("  v_cvt_pk_bf16_f32 v5, v6, v7")
            e("  global_store_dwordx2 v2, v[4:5], s[16:17] %s" % self.outpol)
        else:
            self.final_combine("sc1")
        e("L_end:")
        if self.stamp:
            e("  s_cmp_lg_u32 s3, 0")
            e("  s_cbranch_scc1 L_exit")
            e("  s_waitcnt vmcnt(0)")
            e("  s_memrealtime s[50:51]")
            e("  s_waitcnt lgkmcnt(0)")
            self.store_stamps(True)
        e("L_exit:")
        e("  s_endpgm")
        e('.section .rodata,"a"')
        e(".p2align 6")
        e(".amdhsa_kernel %s_kernel" % NAME)
        nv = self.nvgpr()
        e("  .amdhsa_next_free_vgpr %d" % nv)
        e("  .amdhsa_next_free_sgpr 80")
        e("  .amdhsa_accum_offset %d" % ((nv + 3) // 4 * 4))
        e("  .amdhsa_group_segment_fixed_size 0")
        e("  .amdhsa_kernarg_size 72")
        e("  .amdhsa_user_sgpr_count 2")
        e("  .amdhsa_user_sgpr_kernarg_segment_ptr 1")
        e("  .amdhsa_system_sgpr_workgroup_id_x 1")
        e(".end_amdhsa_kernel")
        return "\n".join(self.lines) + "\n"

    def store_stamps(self, final):
        e = self.e
        e("  s_mul_i32 s52, s2, %d" % self.W)
        e("  s_add_u32 s52, s52, s3")
        e("  s_lshl_b32 s52, s52, 6")
        e("  s_add_u32 s52, s52, 0x20000000")
        e("  s_add_u32 s54, s20, s52")
        e("  s_addc_u32 s55, s21, 0")
        if not final:
            e("  v_mov_b32 v60, s44"); e("  v_mov_b32 v61, s46"); e("  v_mov_b32 v62, s48"); e("  v_mov_b32 v63, s2")
            e("  v_mov_b32 v3, 0")
            e("  global_store_dwordx4 v3, v[60:63], s[54:55]")
            e("  v_mov_b32 v64, s58")
            e("  global_store_dword v3, v64, s[54:55] offset:48")
            for r in range(60, 68): e("  s_mov_b32 s%d, 0" % r)
        else:
            e("  v_mov_b32 v60, s50")
            e("  s_getreg_b32 s56, hwreg(HW_REG_XCC_ID)")
            e("  s_getreg_b32 s57, hwreg(HW_REG_HW_ID)")
            e("  v_mov_b32 v61, s56"); e("  v_mov_b32 v62, s57"); e("  v_mov_b32 v63, 0"); e("  v_mov_b32 v3, 0")
            e("  global_store_dwordx4 v3, v[60:63], s[54:55] offset:16")
            e("  v_mov_b32 v64, s60"); e("  v_mov_b32 v65, s62"); e("  v_mov_b32 v66, s64"); e("  v_mov_b32 v67, s66")
            e("  global_store_dwordx4 v3, v[64:67], s[54:55] offset:32")

    def merge(self, n, OB, MB, OD, MD):
        e = self.e
        e("  v_mov_b32 v%d, v%d" % (MD, MB))
        for w in range(1, n): e("  v_max_f32 v%d, v%d, v%d" % (MD, MD, MB + 2 * w))
        for w in range(n): e("  v_sub_f32 v%d, v%d, v%d" % (MB + 2 * w, MB + 2 * w, MD))
        if self.kmode == 1:
            for w in range(n): e("  v_mul_f32 v%d, s34, v%d" % (MB + 2 * w, MB + 2 * w))
        for w in range(n): e("  v_exp_f32 v%d, v%d" % (MB + 2 * w, MB + 2 * w))
        e("  s_nop 0")
        e("  v_mul_f32 v%d, v%d, v%d" % (MD + 1, MB, MB + 1))
        for w in range(1, n): e("  v_fmac_f32 v%d, v%d, v%d" % (MD + 1, MB + 2 * w, MB + 2 * w + 1))
        for r in range(4): e("  v_mul_f32 v%d, v%d, v%d" % (OD + r, MB, OB + r))
        for w in range(1, n):
            for r in range(4): e("  v_fmac_f32 v%d, v%d, v%d" % (OD + r, MB + 2 * w, OB + 4 * w + r))

    def final_combine(self, pol):
        e = self.e; S = self.S
        e("  s_mul_i32 s36, s22, %d" % (S * 2048))
        e("  s_add_u32 s40, s20, s36")
        e("  s_addc_u32 s41, s21, 0")
        OB = 76; MB = 76 + 4 * S
        for s in range(S):
            off = s * 2048
            if off + 1024 + 16 <= 4095:
                e("  global_load_dwordx4 v[%d:%d], v1, s[40:41] offset:%d %s" % (OB + 4 * s, OB + 4 * s + 3, off, pol))
                e("  global_load_dwordx2 v[%d:%d], v1, s[40:41] offset:%d %s" % (MB + 2 * s, MB + 2 * s + 1, off + 1024, pol))
            else:
                e("  v_add_u32 v3, %d, v1" % off)
                e("  global_load_dwordx4 v[%d:%d], v3, s[40:41] %s" % (OB + 4 * s, OB + 4 * s + 3, pol))
                e("  global_load_dwordx2 v[%d:%d], v3, s[40:41] offset:1024 %s" % (MB + 2 * s, MB + 2 * s + 1, pol))
        e("  s_waitcnt vmcnt(0)")
        if self.stamp: e("  s_memrealtime s[66:67]")
        self.merge(S, OB, MB, 4, 8)
        e("  v_rcp_f32 v9, v9")
        e("  s_nop 0")
        for r in range(4): e("  v_mul_f32 v%d, v%d, v9" % (4 + r, 4 + r))
        e("  v_cvt_pk_bf16_f32 v4, v4, v5")
        e("  v_cvt_pk_bf16_f32 v5, v6, v7")
        e("  s_lshl_b32 s36, s22, 9")
        e("  s_add_u32 s16, s16, s36")
        e("  s_addc_u32 s17, s17, 0")
        e("  v_lshrrev_b32 v2, 1, v1             ; lane*8")
        e("  global_store_dwordx2 v2, v[4:5], s[16:17]")

if __name__ == "__main__":
    ap = argparse.ArgumentParser()
    ap.add_argument("-o", default="cdna_kernels/%s.s" % NAME)
    ap.add_argument("--S", type=int, default=2)
    ap.add_argument("--W", type=int, default=4)
    ap.add_argument("--R", type=int, default=8)
    ap.add_argument("--pol", default="nt")
    ap.add_argument("--map", type=int, default=0)
    ap.add_argument("--stamp", action="store_true")
    ap.add_argument("--ldsmin", type=int, default=98304)
    ap.add_argument("--amap", default="")
    ap.add_argument("--kmode", type=int, default=1)
    ap.add_argument("--kpol", default=None)
    ap.add_argument("--wv", type=int, default=63)
    ap.add_argument("--fine", type=int, default=0)
    ap.add_argument("--boost", default="")
    ap.add_argument("--kfine", type=int, default=0)
    ap.add_argument("--trace", action="store_true")
    ap.add_argument("--fast", action="store_true")
    ap.add_argument("--early", action="store_true")
    ap.add_argument("--ss", type=int, default=-1)
    ap.add_argument("--grp", type=int, default=-1)
    ap.add_argument("--wpat", default="")
    ap.add_argument("--outpol", default="")
    a = ap.parse_args()
    am = parse_amap(a.amap)
    if am is not None and a.ss >= 0: am["ss"] = 1 << a.ss
    g = Gen2(S=a.S, W=a.W, R=a.R, pol=a.pol, mapmode=a.map, stamp=a.stamp, ldsmin=a.ldsmin, amap=am, kmode=a.kmode, kpol=a.kpol, wv=a.wv, fine=a.fine, boost=tuple(int(x) for x in a.boost.split(',')) if a.boost else None, kfine=a.kfine, trace=a.trace, fast=a.fast, early=a.early, outpol=a.outpol, grp=a.grp, wpat=[int(x) for x in a.wpat.split(',')] if a.wpat else None)
    open(a.o, "w").write(g.build())
    print("wrote", a.o, "vgprs", g.nvgpr(), "lds", g.lds)
```

```python
import struct, sys, math, argparse
sys.path.insert(0, "gen")
from gen import NAME, HEADER, f32bits, hexf, C_SCALE, parse_amap

class Gen2:
    V_KOFF, V_VOFF = 1, 2
    V_Q = 4; V_MASK = 20; V_O = 24; V_SA = 28; V_P = 32; V_B = 36
    V_M, V_NMC, V_L, V_TM, V_T1, V_ST, V_LA, V_LANE = 52, 53, 54, 55, 56, 57, 58, 59
    V_VT = 64; V_SB = 68; V_VR = 72; RING = 76
    V_D = 36
    V_C = 60

    def __init__(self, S=2, W=4, R=8, pol="nt", mapmode=0, stamp=False, ldsmin=98304, amap=None, kmode=1, kpol=None, wv=63, fine=0, boost=None, kboost=None, kfine=0, trace=False, fast=False, early=False, outpol='', grp=-1, wpat=None, bstages=None):
        self.bstages = bstages
        self.wpat = wpat
        self.grp = grp
        self.early = early
        self.outpol = outpol
        self.fast = fast
        self.trace = trace
        self.kfine = kfine
        self.boost = boost
        self.kboost = kboost
        self.depth = fine
        self.fine = fine
        self.wv = wv
        self.kmode = kmode
        self.kpol = pol if kpol is None else kpol
        self.S, self.W, self.R, self.pol, self.mapmode, self.stamp = S, W, R, pol, mapmode, stamp
        self.NWG = 128 * S
        self.KEYS_WG = 8192 // S
        self.WGBYTES = self.KEYS_WG * 256
        self.NT = self.KEYS_WG // 16 // W
        assert self.NT % R == 0 and R % 2 == 0
        lw = int(math.log2(W))
        if amap is None:
            amap = dict(gs=1024, ws=4096, fields=[(0, int(math.log2(self.NT)), 12 + lw)])
        self.amap = amap
        self.SC_BYTES = W * self.NT * 128
        self.EP = self.SC_BYTES
        self.lds = max(self.EP + W * 1024 + W * 16, ldsmin)
        self.lines = []

    def e(self, s): self.lines.append(s)
    def slot(self, j): return self.RING + 16 * j
    def nvgpr(self): return max(self.RING + 16 * self.R, 76 + 6 * self.W + 2, 76 + 6 * self.S + 4)

    def calc_off(self):
        first = True
        for (lo, n, pos) in self.amap["fields"]:
            dst = "s68" if first else "s71"
            self.e("  s_bfe_u32 %s, s70, 0x%x" % (dst, (n << 16) | lo))
            if pos: self.e("  s_lshl_b32 %s, %s, %d" % (dst, dst, pos))
            if not first: self.e("  s_or_b32 s68, s68, s71")
            first = False
        self.e("  s_add_u32 s70, s70, 1")

    def issue_k(self, j):
        if self.fine:
            for r in range(4): self.issue_k1(j, r)
            return
        k = self.slot(j)
        gs = self.amap["gs"]
        for t in range(4):
            if self.kmode == 1:
                self.e("  buffer_load_dwordx4 v[%d:%d], v%d, s[24:27], s68 offen offset:%d %s" %
                   (k + 4 * t, k + 4 * t + 3, self.V_KOFF, t * 64, self.kpol))
            else:
                assert gs * 3 <= 3072
                self.e("  buffer_load_dwordx4 v[%d:%d], v%d, s[24:27], s68 offen offset:%d %s" %
                   (k + 4 * t, k + 4 * t + 3, self.V_KOFF, t * gs, self.kpol))

    def issue_v(self, j):
        v = self.slot(j); gs = self.amap["gs"]
        for r in range(4):
            if gs * 3 <= 3072:
                self.e("  buffer_load_dwordx4 v[%d:%d], v%d, s[28:31], s68 offen offset:%d %s" %
                       (v + 4 * r, v + 4 * r + 3, self.V_VOFF, r * gs, self.pol))
            else:
                self.e("  buffer_load_dwordx4 v[%d:%d], v%d, s[28:31], s68 offen %s" %
                       (v + 4 * r, v + 4 * r + 3, self.V_VR + r, self.pol))

    def issue_k1(self, j, r):
        k = self.slot(j); gs = self.amap["gs"]
        if gs * 3 <= 3072:
            self.e("  buffer_load_dwordx4 v[%d:%d], v%d, s[24:27], s68 offen offset:%d %s" %
               (k + 4 * r, k + 4 * r + 3, self.V_KOFF, r * gs, self.kpol))
        else:
            self.e("  buffer_load_dwordx4 v[%d:%d], v%d, s[24:27], s68 offen %s" %
               (k + 4 * r, k + 4 * r + 3, 16 + r, self.kpol))
    def issue_v1(self, j, r):
        v = self.slot(j); gs = self.amap["gs"]
        if gs * 3 <= 3072:
            self.e("  buffer_load_dwordx4 v[%d:%d], v%d, s[28:31], s68 offen offset:%d %s" %
               (v + 4 * r, v + 4 * r + 3, self.V_VOFF, r * gs, self.pol))
        else:
            self.e("  buffer_load_dwordx4 v[%d:%d], v%d, s[28:31], s68 offen %s" %
               (v + 4 * r, v + 4 * r + 3, self.V_VR + r, self.pol))

    def qk(self, k, s):
        q = self.V_Q
        for t in range(4):
            c = "0" if t == 0 else "v[%d:%d]" % (s, s + 3)
            self.e("  v_mfma_f32_16x16x32_bf16 v[%d:%d], v[%d:%d], v[%d:%d], %s" %
                   (s, s + 3, k + 4 * t, k + 4 * t + 3, q + 4 * t, q + 4 * t + 3, c))

    def ktile(self, j, nxt):
        R = self.R
        s = self.V_SA if j % 2 == 0 else self.V_SB
        tm = self.V_TM
        if self.fine:
            assert self.kmode == 2
            k = self.slot(j); q = self.V_Q; d = self.V_D
            self.calc_off()
            for r in range(4):
                self.e("  s_waitcnt vmcnt(%d)" % min(self.depth - 1 + self.wd(r), 4 * R - 1))
                self.e("  v_mfma_f32_16x16x32_bf16 v[%d:%d], v[%d:%d], v[%d:%d], 0" %
                       (d + 4 * r, d + 4 * r + 3, k + 4 * r, k + 4 * r + 3, q, q + 3))
                if nxt == 'k': self.issue_k1(j, r)
                else: self.issue_v1(j, r)
            self.e("  s_nop 0")
            for r in range(4):
                if r == 3: self.e("  s_nop 0")
                self.reduce_dpp(self.V_D + 4 * r, s + r)
            self.e("  s_nop 0")
            self.e("  v_max3_f32 v%d, v%d, v%d, v%d" % (tm, s, s + 1, tm))
            self.e("  v_max3_f32 v%d, v%d, v%d, v%d" % (tm, s + 2, s + 3, tm))
            self.e("  ds_write_b128 v%d, v[%d:%d] offset:%d" % (self.V_LA, s, s + 3, j * 128))
            self.trace_pt(12)
            return
        self.e("  s_waitcnt vmcnt(%d)" % min(self.wv, 4 * (R - 1)))
        if self.kmode == 1:
            self.qk(self.slot(j), s)
        else:
            k = self.slot(j); q = self.V_Q; d = self.V_D
            for r in range(4):
                self.e("  v_mfma_f32_16x16x32_bf16 v[%d:%d], v[%d:%d], v[%d:%d], 0" %
                       (d + 4 * r, d + 4 * r + 3, k + 4 * r, k + 4 * r + 3, q, q + 3))
        self.calc_off()
        if nxt == 'k': self.issue_k(j)
        else: self.issue_v(j)
        self.e("  s_nop 1")
        if self.kmode == 2:
            for r in range(4):
                self.reduce_dpp(self.V_D + 4 * r, s + r)
            self.e("  s_nop 0")
        self.e("  v_max3_f32 v%d, v%d, v%d, v%d" % (tm, s, s + 1, tm))
        self.e("  v_max3_f32 v%d, v%d, v%d, v%d" % (tm, s + 2, s + 3, tm))
        self.e("  ds_write_b128 v%d, v[%d:%d] offset:%d" % (self.V_LA, s, s + 3, j * 128))

    def wd(self, r):
        if self.wpat is None or self.depth != self.fine: return 0
        return self.wpat[r]

    def trace_pt(self, vreg):
        if not self.trace: return
        self.e("  s_memrealtime s[74:75]")
        self.e("  s_waitcnt lgkmcnt(0)")
        self.e("  s_mov_b32 m0, s72")
        self.e("  v_writelane_b32 v%d, s74, m0" % vreg)
        self.e("  s_add_u32 s72, s72, 1")

    def reduce_dpp(self, d, dst):
        self.e("  v_mul_f32_dpp v%d, v%d, v%d quad_perm:[0,0,0,0] row_mask:0xf bank_mask:0xf" % (dst, d, self.V_C))
        for s in range(1, 4):
            self.e("  v_fmac_f32_dpp v%d, v%d, v%d quad_perm:[%d,%d,%d,%d] row_mask:0xf bank_mask:0xf" %
                   (dst, d + s, self.V_C, s, s, s, s))

    def vtile(self, j, nxt, wait, last):
        s = self.V_SA if j % 2 == 0 else self.V_SB
        sn = self.V_SB if j % 2 == 0 else self.V_SA
        p, b, o, mk, l, nmc = self.V_P, self.V_B, self.V_O, self.V_MASK, self.V_L, self.V_NMC
        v = self.slot(j)
        if not last:
            self.e("  ds_read_b128 v[%d:%d], v%d offset:%d" % (sn, sn + 3, self.V_LA, (j + 1) * 128))
            self.e("  s_waitcnt lgkmcnt(1)")
        else:
            self.e("  s_waitcnt lgkmcnt(0)")
        for r in range(4):
            if self.kmode == 1:
                self.e("  v_fma_f32 v%d, v%d, s34, v%d" % (p + r, s + r, nmc))
            else:
                self.e("  v_add_f32 v%d, v%d, v%d" % (p + r, s + r, nmc))
        for r in range(4):
            self.e("  v_exp_f32 v%d, v%d" % (p + r, p + r))
        self.e("  s_nop 0")
        for r in range(4):
            self.e("  v_add_f32 v%d, v%d, v%d" % (l, l, p + r))
        for r in range(4):
            self.e("  v_cvt_pk_bf16_f32 v%d, v%d, v%d" % (p + r, p + r, p + r))
        for r in range(4):
            for rr in range(4):
                self.e("  v_and_b32 v%d, v%d, v%d" % (b + 4 * r + rr, p + r, mk + rr))
        if self.fine:
            if nxt: self.calc_off()
            for r in range(4):
                w = (4 * self.R - 1) if nxt else (wait + 3 - r)
                self.e("  s_waitcnt vmcnt(%d)" % min(self.depth - 1 + self.wd(r), w))
                self.e("  v_mfma_f32_16x16x32_bf16 v[%d:%d], v[%d:%d], v[%d:%d], v[%d:%d]" %
                       (o, o + 3, v + 4 * r, v + 4 * r + 3, b + 4 * r, b + 4 * r + 3, o, o + 3))
                if nxt: self.issue_v1(j, r)
            self.trace_pt(13)
            return
        self.e("  s_waitcnt vmcnt(%d)" % min(self.wv, wait))
        for r in range(4):
            self.e("  v_mfma_f32_16x16x32_bf16 v[%d:%d], v[%d:%d], v[%d:%d], v[%d:%d]" %
                   (o, o + 3, v + 4 * r, v + 4 * r + 3, b + 4 * r, b + 4 * r + 3, o, o + 3))
        if nxt:
            self.calc_off()
            self.issue_v(j)

    def build(self):
        S, W, R, NT = self.S, self.W, self.R, self.NT
        e = self.e
        lane = self.V_LANE
        e(HEADER.rstrip("\n"))
        e("; @launch grid=(%d,1,1) block=(%d,1,1) lds=%d" % (self.NWG, 64 * W, self.lds))
        e('.amdgcn_target "amdgcn-amd-amdhsa--gfx950"')
        e(".text")
        e(".globl %s_kernel" % NAME)
        e(".p2align 8")
        e(".type %s_kernel,@function" % NAME)
        e("%s_kernel:" % NAME)
        e("  s_cmp_ge_u32 s2, %d" % self.NWG)
        e("  s_cbranch_scc1 L_exit")
        if self.stamp: e("  s_memrealtime s[44:45]")
        e("  s_load_dwordx16 s[4:19], s[0:1], 0")
        e("  s_load_dwordx2 s[20:21], s[0:1], 64")
        e("  v_and_b32 v%d, 63, v0" % lane)
        e("  v_lshrrev_b32 v3, 6, v0")
        e("  s_nop 0")
        e("  v_readfirstlane_b32 s3, v3")
        lg = int(math.log2(S))
        if self.mapmode == 0:
            e("  s_and_b32 s22, s2, 127"); e("  s_lshr_b32 s23, s2, 7")
        elif self.mapmode == 1:
            e("  s_lshr_b32 s22, s2, %d" % lg); e("  s_and_b32 s23, s2, %d" % (S - 1))
        elif self.mapmode == 2:
            e("  s_and_b32 s22, s2, 7"); e("  s_lshl_b32 s22, s22, 4")
            e("  s_lshr_b32 s23, s2, %d" % (3 + lg)); e("  s_add_u32 s22, s22, s23")
            e("  s_lshr_b32 s23, s2, 3"); e("  s_and_b32 s23, s23, %d" % (S - 1))
        elif self.mapmode == 3:
            e("  s_lshr_b32 s23, s2, %d" % (3 + lg))
            e("  s_add_u32 s22, s2, s23"); e("  s_and_b32 s22, s22, 7")
            e("  s_lshl_b32 s23, s23, 3"); e("  s_add_u32 s22, s22, s23")
            e("  s_lshr_b32 s23, s2, 3"); e("  s_and_b32 s23, s23, %d" % (S - 1))
        e("  v_lshrrev_b32 v60, 4, v%d            ; g" % lane)
        e("  v_and_b32 v61, 15, v%d               ; i / n" % lane)
        e("  v_lshlrev_b32 v%d, 4, v%d" % (self.V_VOFF, lane))
        if self.kmode == 1:
            e("  v_and_b32 v62, 3, v61")
            e("  v_mul_u32_u24 v62, %d, v62          ; (i&3)*gs" % self.amap["gs"])
            e("  v_lshrrev_b32 v63, 2, v61")
            e("  v_lshlrev_b32 v63, 8, v63           ; (i>>2)*256")
            e("  v_add_u32 v62, v62, v63")
            e("  v_lshlrev_b32 v63, 4, v60           ; g*16")
        else:
            e("  v_lshrrev_b32 v62, 2, v61")
            e("  v_lshlrev_b32 v62, 8, v62           ; kk*256")
            e("  v_and_b32 v63, 3, v61               ; s")
            e("  v_lshlrev_b32 v63, 4, v63           ; s*16")
            e("  v_lshl_add_u32 v63, v60, 6, v63     ; g*64 + s*16")
        e("  v_add_u32 v%d, v62, v63" % self.V_KOFF)
        e("  v_lshrrev_b32 v62, 3, v61")
        e("  v_lshlrev_b32 v62, 8, v62")
        e("  v_add_u32 v3, v62, v63              ; Q voffset")
        for r in range(4):
            e("  v_add_u32 v%d, %d, v%d" % (self.V_VR + r, r * self.amap["gs"], self.V_VOFF))
        if self.kmode == 2:
            for r in range(4):
                e("  v_add_u32 v%d, %d, v%d" % (16 + r, r * self.amap["gs"], self.V_KOFF))
        e("  v_lshrrev_b32 v62, 3, v61           ; h")
        e("  v_lshl_add_u32 v62, v60, 1, v62     ; g*2+h")
        e("  v_lshlrev_b32 v62, 4, v62")
        e("  s_mul_i32 s36, s3, %d" % (NT * 128))
        e("  v_add_u32 v%d, s36, v62" % self.V_LA)
        e("  v_and_b32 v62, 1, v61")
        e("  v_cmp_eq_u32 vcc, 1, v62")
        e("  v_mov_b32 v62, 0xffff")
        e("  v_mov_b32 v63, 0xffff0000")
        e("  v_cndmask_b32 v62, v62, v63, vcc")
        e("  v_bfe_u32 v63, v61, 1, 2             ; (n&7)>>1")
        for rr in range(4):
            e("  v_cmp_eq_u32 vcc, %d, v63" % rr)
            e("  s_nop 1")
            e("  v_cndmask_b32 v%d, 0, v62, vcc" % (self.V_MASK + rr))
        e("  s_mov_b32 s34, %s" % hexf(C_SCALE))
        e("  s_mov_b32 s35, %s" % hexf(-C_SCALE))
        e("  v_mov_b32 v%d, 0xff800000" % self.V_TM)
        e("  v_mov_b32 v%d, 0xff800000" % self.V_ST)
        for r in range(4):
            e("  v_mov_b32 v%d, 0" % (self.V_VT + r))
        e("  s_waitcnt lgkmcnt(0)")
        e("  s_lshl_b32 s36, s22, 9")
        e("  s_add_u32 s4, s4, s36")
        e("  s_addc_u32 s5, s5, 0")
        for t in range(4 if self.kmode == 1 else 1):
            e("  global_load_dwordx4 v[%d:%d], v3, s[4:5] offset:%d" % (self.V_Q + 4 * t, self.V_Q + 4 * t + 3, t * 64))
        if self.grp >= 0:
            G = self.grp
            e("  s_lshr_b32 s36, s2, %d" % (G + 1))
            e("  s_lshl_b32 s36, s36, %d" % (21 + G))
            e("  s_and_b32 s37, s2, %d" % ((1 << (G + 1)) - 1))
            e("  s_mul_i32 s37, s37, %d" % self.amap["ss"])
            e("  s_add_u32 s36, s36, s37")
        else:
            e("  s_lshl_b32 s36, s22, 21")
            e("  s_mul_i32 s37, s23, %d" % self.amap.get("ss", self.WGBYTES))
            e("  s_add_u32 s36, s36, s37")
        e("  s_mul_i32 s37, s3, %d" % self.amap["ws"])
        e("  s_add_u32 s36, s36, s37")
        e("  s_add_u32 s24, s6, s36")
        e("  s_addc_u32 s25, s7, 0")
        e("  s_and_b32 s25, s25, 0xffff")
        if self.grp >= 0:
            e("  s_mov_b32 s26, %d" % (1 << (21 + self.grp)))
            e("  s_and_b32 s27, s2, %d" % ((1 << (self.grp + 1)) - 1))
            e("  s_mul_i32 s27, s27, %d" % self.amap["ss"])
            e("  s_sub_u32 s26, s26, s27")
            e("  s_sub_u32 s26, s26, s37")
        elif "ss" in self.amap:
            e("  s_mov_b32 s26, 0x200000")
            e("  s_mul_i32 s27, s23, %d" % self.amap["ss"])
            e("  s_sub_u32 s26, s26, s27")
            e("  s_sub_u32 s26, s26, s37")
        else:
            e("  s_sub_u32 s26, %d, s37" % self.WGBYTES)
        e("  s_mov_b32 s27, 0x20000")
        e("  s_add_u32 s28, s8, s36")
        e("  s_addc_u32 s29, s9, 0")
        e("  s_and_b32 s29, s29, 0xffff")
        e("  s_mov_b32 s30, s26")
        e("  s_mov_b32 s31, 0x20000")
        e("  s_or_b32 s38, s23, s3")
        e("  s_cmp_lg_u32 s38, 0")
        e("  s_cbranch_scc1 L_notree_issue")
        e("  s_lshl_b32 s36, s22, 8              ; pair*256")
        e("  s_add_u32 s10, s10, s36")
        e("  s_addc_u32 s11, s11, 0")
        e("  s_add_u32 s12, s12, s36")
        e("  s_addc_u32 s13, s13, 0")
        if self.kmode == 1:
            e("  v_lshlrev_b32 v62, 4, v60           ; g*16")
            for t in range(4):
                e("  global_load_dwordx4 v[%d:%d], v62, s[10:11] offset:%d" % (self.V_B + 4 * t, self.V_B + 4 * t + 3, t * 64))
        else:
            e("  v_and_b32 v63, 3, v61")
            e("  v_lshlrev_b32 v63, 4, v63")
            e("  v_lshl_add_u32 v62, v60, 6, v63     ; g*64 + s*16")
            e("  global_load_dwordx4 v[%d:%d], v62, s[10:11]" % (self.V_B + 4, self.V_B + 7))
        e("  v_and_b32 v63, 7, v61")
        e("  v_lshlrev_b32 v63, 1, v63")
        e("  v_lshl_add_u32 v63, v60, 6, v63")
        for r in range(4):
            e("  global_load_ushort v%d, v63, s[12:13] offset:%d" % (self.V_VT + r, r * 16))
        e("  s_lshr_b32 s36, s22, 4")
        e("  s_lshl_b32 s37, s36, 1")
        e("  s_and_b32 s37, s37, 0xfffffffc")
        e("  s_load_dword s39, s[14:15], s37")
        e("L_notree_issue:")
        e("  s_mov_b32 s70, 0")
        for j in range(R):
            self.calc_off()
            self.issue_k(j)
        e("  s_cmp_lg_u32 s38, 0")
        e("  s_cbranch_scc1 L_notree")
        e("  s_waitcnt lgkmcnt(0)")
        e("  s_and_b32 s36, s36, 1")
        e("  s_lshl_b32 s36, s36, 4")
        e("  s_lshr_b32 s39, s39, s36")
        e("  s_lshl_b32 s39, s39, 16")
        e("  s_waitcnt vmcnt(%d)" % (4 * R))
        if self.kmode == 1:
            self.qk(self.V_B, self.V_SA)
            e("  s_nop 7")
            e("  v_sub_f32 v62, 1.0, s39")
            e("  v_mul_f32 v62, %s, v62" % hexf(-1e9 * math.sqrt(128.0)))
            e("  v_add_f32 v%d, v%d, v62" % (self.V_ST, self.V_SA))
        else:
            e("  v_mov_b32 v%d, s34" % self.V_C)
            e("  v_mfma_f32_16x16x32_bf16 v[%d:%d], v[%d:%d], v[%d:%d], 0" % (self.V_D, self.V_D + 3, self.V_B + 4, self.V_B + 7, self.V_Q, self.V_Q + 3))
            e("  s_nop 7")
            self.reduce_dpp(self.V_D, self.V_SA)
            e("  v_sub_f32 v62, 1.0, s39")
            e("  v_mul_f32 v62, %s, v62" % hexf(-1e9 * math.log2(math.e)))
            e("  v_add_f32 v%d, v%d, v62" % (self.V_ST, self.V_SA))
        for r in range(4):
            e("  v_lshlrev_b32 v%d, 16, v%d" % (self.V_VT + r, self.V_VT + r))
        e("L_notree:")
        if self.kmode == 2:
            e("  v_mov_b32 v%d, s34" % self.V_C)
        if self.stamp:
            e("  s_waitcnt vmcnt(%d)" % (4 * (R - 1)))
            e("  s_memrealtime s[46:47]")
            e("  s_waitcnt lgkmcnt(0)")
        if self.trace: e("  s_mov_b32 s72, 0")
        if self.kfine: self.depth = self.kfine
        n1 = NT // R - 1
        kdep = self.depth
        kb = self.kboost[0] if self.kboost else 0
        for (cnt, dep, lab) in ((kb, self.kboost[1] if self.kboost else 0, "L_p1a"), (n1 - kb, kdep, "L_p1")):
            if cnt <= 0: continue
            self.depth = dep
            e("  s_mov_b32 s33, %d" % cnt)
            e("%s:" % lab)
            for j in range(R): self.ktile(j, 'k')
            e("  v_add_u32 v%d, %d, v%d" % (self.V_LA, R * 128, self.V_LA))
            e("  s_sub_u32 s33, s33, 1")
            e("  s_cmp_lg_u32 s33, 0")
            e("  s_cbranch_scc1 %s" % lab)
        self.depth = kdep
        e("  s_mov_b32 s70, 0")
        for j in range(R): self.ktile(j, 'v')
        if self.trace: e("  s_mov_b32 s72, 0")
        if self.stamp:
            e("  s_memrealtime s[58:59]")
        tm, t1, m = self.V_TM, self.V_T1, self.V_M
        e("  v_subrev_u32 v%d, %d, v%d" % (self.V_LA, (NT - R) * 128, self.V_LA))
        e("  v_mov_b32 v%d, v%d" % (t1, tm))
        e("  s_nop 1")
        e("  v_permlane16_swap_b32 v%d, v%d" % (tm, t1))
        e("  s_nop 1")
        e("  v_max_f32 v%d, v%d, v%d" % (tm, tm, t1))
        e("  v_mov_b32 v%d, v%d" % (t1, tm))
        e("  s_nop 1")
        e("  v_permlane32_swap_b32 v%d, v%d" % (tm, t1))
        e("  s_nop 1")
        e("  v_max_f32 v%d, v%d, v%d" % (tm, tm, t1))
        e("  v_max_f32 v%d, v%d, v%d" % (m, tm, self.V_ST))
        if self.kmode == 1:
            e("  v_mul_f32 v%d, s35, v%d" % (self.V_NMC, m))
            e("  v_fma_f32 v%d, v%d, s34, v%d" % (t1, self.V_ST, self.V_NMC))
        else:
            e("  v_sub_f32 v%d, 0, v%d" % (self.V_NMC, m))
            e("  v_add_f32 v%d, v%d, v%d" % (t1, self.V_ST, self.V_NMC))
        e("  v_exp_f32 v%d, v%d" % (t1, t1))
        e("  v_cmp_gt_u32 vcc, 16, v%d" % lane)
        e("  s_nop 1")
        e("  v_cndmask_b32 v%d, 0, v%d, vcc" % (self.V_L, t1))
        for r in range(4):
            e("  v_mul_f32 v%d, v%d, v%d" % (self.V_O + r, t1, self.V_VT + r))
        e("  s_waitcnt lgkmcnt(0)")
        e("  ds_read_b128 v[%d:%d], v%d" % (self.V_SA, self.V_SA + 3, self.V_LA))
        stages = list(self.bstages) if self.bstages else ([(self.boost[0], self.boost[1])] if self.boost else [])
        nboost = sum(c for c, d in stages) - (1 if stages else 0)
        plan = [(n1 - nboost, self.fine)]
        for i, (c, d) in enumerate(stages):
            plan.append((c - (1 if i == len(stages) - 1 else 0), d))
        for i, (cnt, dep) in enumerate(plan):
            if cnt <= 0: continue
            lab = "L_p2_%d" % i
            self.depth = dep
            e("  s_mov_b32 s33, %d" % cnt)
            e("%s:" % lab)
            for j in range(R): self.vtile(j, True, 4 * (R - 1), False)
            e("  v_add_u32 v%d, %d, v%d" % (self.V_LA, R * 128, self.V_LA))
            e("  s_sub_u32 s33, s33, 1")
            e("  s_cmp_lg_u32 s33, 0")
            e("  s_cbranch_scc1 %s" % lab)
        self.depth = stages[-1][1] if stages else self.fine
        for j in range(R): self.vtile(j, False, 4 * (R - 1 - j), j == R - 1)
        if self.stamp:
            e("  s_memrealtime s[48:49]")
            e("  s_waitcnt lgkmcnt(0)")
            self.store_stamps(False)
        if self.trace:
            e("  s_mul_i32 s52, s2, %d" % self.W)
            e("  s_add_u32 s52, s52, s3")
            e("  s_lshl_b32 s52, s52, 9")
            e("  s_add_u32 s52, s52, 0x20100000")
            e("  s_add_u32 s54, s20, s52")
            e("  s_addc_u32 s55, s21, 0")
            e("  v_lshlrev_b32 v14, 2, v%d" % lane)
            e("  global_store_dword v14, v12, s[54:55]")
            e("  global_store_dword v14, v13, s[54:55] offset:256")
        if self.fast and self.early:
            e("  s_lshr_b32 s36, s22, 1")
            e("  s_lshl_b32 s36, s36, 2")
            e("  v_mov_b32 v12, s36")
            e("  v_mov_b32 v13, 0")
            e("  s_cmp_lg_u32 s3, 0")
            e("  s_cbranch_scc1 L_noearly")
            e("  s_mov_b64 exec, 1")
            e("  global_atomic_add v14, v12, v13, s[18:19] sc0")
            e("  s_mov_b64 exec, -1")
            e("L_noearly:")
        l = self.V_L
        e("  v_mov_b32 v%d, v%d" % (t1, l))
        e("  s_nop 1")
        e("  v_permlane16_swap_b32 v%d, v%d" % (l, t1))
        e("  s_nop 1")
        e("  v_add_f32 v%d, v%d, v%d" % (l, l, t1))
        e("  v_mov_b32 v%d, v%d" % (t1, l))
        e("  s_nop 1")
        e("  v_permlane32_swap_b32 v%d, v%d" % (l, t1))
        e("  s_nop 1")
        e("  v_add_f32 v%d, v%d, v%d" % (l, l, t1))
        e("  v_lshrrev_b32 v60, 4, v%d" % lane)
        e("  v_and_b32 v61, 15, v%d" % lane)
        e("  v_lshrrev_b32 v62, 3, v61")
        e("  v_lshlrev_b32 v62, 9, v62")
        e("  v_lshl_add_u32 v62, v60, 7, v62")
        e("  v_and_b32 v63, 7, v61")
        e("  v_lshl_add_u32 v62, v63, 2, v62")
        e("  s_lshl_b32 s36, s3, 10")
        e("  s_add_u32 s36, s36, %d" % self.EP)
        e("  v_add_u32 v62, s36, v62")
        for r in range(4):
            e("  ds_write_b32 v62, v%d offset:%d" % (self.V_O + r, r * 32))
        e("  v_lshrrev_b32 v63, 3, v61")
        e("  v_lshlrev_b32 v63, 3, v63")
        e("  s_lshl_b32 s36, s3, 4")
        e("  s_add_u32 s36, s36, %d" % (self.EP + W * 1024))
        e("  v_add_u32 v63, s36, v63")
        e("  v_mov_b32 v60, v%d" % m)
        e("  v_mov_b32 v61, v%d" % l)
        e("  ds_write_b64 v63, v[60:61]")
        if self.fast and self.early:
            e("  s_waitcnt lgkmcnt(0)")
        else:
            e("  s_waitcnt vmcnt(0) lgkmcnt(0)")
        e("  s_barrier")
        e("  s_cmp_lg_u32 s3, 0")
        e("  s_cbranch_scc1 L_end")
        if self.stamp: e("  s_memrealtime s[60:61]")
        e("  s_lshr_b32 s36, s22, 1")
        e("  s_lshl_b32 s36, s36, 2")
        e("  s_and_b32 s37, s22, 1")
        e("  s_lshl_b32 s37, s37, 4")
        e("  v_mov_b32 v12, s36")
        if self.fast and not self.early:
            e("  v_mov_b32 v13, 0")
            e("  s_mov_b64 exec, 1")
            e("  global_atomic_add v14, v12, v13, s[18:19] sc0")
            e("  s_mov_b64 exec, -1")
        e("  v_lshlrev_b32 v1, 4, v%d             ; lane*16" % lane)
        e("  v_lshrrev_b32 v2, 5, v%d" % lane)
        e("  v_lshlrev_b32 v2, 3, v2              ; h*8")
        e("  v_add_u32 v2, %d, v2" % (self.EP + W * 1024))
        e("  v_add_u32 v3, %d, v1" % self.EP)
        OB, MB = 76, 76 + 4 * W
        for w in range(W):
            e("  ds_read_b64 v[%d:%d], v2 offset:%d" % (MB + 2 * w, MB + 2 * w + 1, w * 16))
        for w in range(W):
            e("  ds_read_b128 v[%d:%d], v3 offset:%d" % (OB + 4 * w, OB + 4 * w + 3, w * 1024))
        e("  s_mul_i32 s42, s22, %d" % S)
        e("  s_add_u32 s43, s42, s23")
        e("  s_lshl_b32 s43, s43, 11")
        e("  s_add_u32 s40, s20, s43")
        e("  s_addc_u32 s41, s21, 0")
        if self.fast:
            assert S == 2
            e("  s_xor_b32 s43, s43, 2048")
            e("  s_add_u32 s72, s20, s43")
            e("  s_addc_u32 s73, s21, 0")
        e("  s_waitcnt lgkmcnt(0)")
        self.merge(W, OB, MB, 4, 8)
        e("  v_mov_b32 v10, 0")
        e("  v_mov_b32 v11, 0")
        e("  global_store_dwordx4 v1, v[4:7], s[40:41] sc1")
        e("  global_store_dwordx4 v1, v[8:11], s[40:41] offset:1024 sc1")
        if self.fast:
            e("  s_waitcnt vmcnt(2)")
            e("  v_readfirstlane_b32 s43, v14")
            e("  s_nop 3")
            e("  s_lshr_b32 s43, s43, s37")
            e("  s_and_b32 s43, s43, 0xff")
            e("  s_cmp_lg_u32 s43, 0")
            e("  s_cbranch_scc1 L_combine")
        e("  s_waitcnt vmcnt(0)")
        if self.stamp: e("  s_memrealtime s[62:63]")
        e("  s_lshl_b32 s42, 1, s37")
        e("  v_mov_b32 v13, s42")
        e("  s_mov_b64 exec, 1")
        e("  global_atomic_add v14, v12, v13, s[18:19] sc0")
        e("  s_waitcnt vmcnt(0)")
        if self.stamp: e("  s_memrealtime s[64:65]")
        e("  v_readfirstlane_b32 s43, v14")
        e("  s_mov_b64 exec, -1")
        e("  s_nop 3")
        e("  s_lshr_b32 s43, s43, s37")
        e("  s_and_b32 s43, s43, 0xff")
        e("  s_cmp_lg_u32 s43, %d" % (S - 1))
        e("  s_cbranch_scc1 L_end")
        if self.fast:
            e("L_combine:")
            e("  global_load_dwordx4 v[80:83], v1, s[72:73] sc1")
            e("  global_load_dwordx2 v[86:87], v1, s[72:73] offset:1024 sc1")
            for r in range(4): e("  v_mov_b32 v%d, v%d" % (76 + r, 4 + r))
            e("  v_mov_b32 v84, v8")
            e("  v_mov_b32 v85, v9")
            e("  s_lshl_b32 s36, s22, 9")
            e("  s_add_u32 s16, s16, s36")
            e("  s_addc_u32 s17, s17, 0")
            e("  v_lshrrev_b32 v2, 1, v1             ; lane*8")
            e("  s_waitcnt vmcnt(0)")
            if self.stamp: e("  s_memrealtime s[66:67]")
            e("  v_max_f32 v8, v84, v86")
            e("  v_sub_f32 v84, v84, v8")
            e("  v_sub_f32 v86, v86, v8")
            if self.kmode == 1:
                e("  v_mul_f32 v84, s34, v84"); e("  v_mul_f32 v86, s34, v86")
            e("  v_exp_f32 v84, v84")
            e("  v_exp_f32 v86, v86")
            e("  s_nop 0")
            e("  v_mul_f32 v85, v84, v85")
            e("  v_mul_f32 v87, v86, v87")
            e("  v_add_f32 v9, v85, v87")
            e("  v_rcp_f32 v9, v9")
            for r in range(4):
                e("  v_mul_f32 v%d, v84, v%d" % (76 + r, 76 + r))
                e("  v_mul_f32 v%d, v86, v%d" % (80 + r, 80 + r))
            for r in range(4):
                e("  v_add_f32 v%d, v%d, v%d" % (4 + r, 76 + r, 80 + r))
            for r in range(4): e("  v_mul_f32 v%d, v%d, v9" % (4 + r, 4 + r))
            e("  v_cvt_pk_bf16_f32 v4, v4, v5")
            e("  v_cvt_pk_bf16_f32 v5, v6, v7")
            e("  global_store_dwordx2 v2, v[4:5], s[16:17] %s" % self.outpol)
        else:
            self.final_combine("sc1")
        e("L_end:")
        if self.stamp:
            e("  s_cmp_lg_u32 s3, 0")
            e("  s_cbranch_scc1 L_exit")
            e("  s_waitcnt vmcnt(0)")
            e("  s_memrealtime s[50:51]")
            e("  s_waitcnt lgkmcnt(0)")
            self.store_stamps(True)
        e("L_exit:")
        e("  s_endpgm")
        e('.section .rodata,"a"')
        e(".p2align 6")
        e(".amdhsa_kernel %s_kernel" % NAME)
        nv = self.nvgpr()
        e("  .amdhsa_next_free_vgpr %d" % nv)
        e("  .amdhsa_next_free_sgpr 80")
        e("  .amdhsa_accum_offset %d" % ((nv + 3) // 4 * 4))
        e("  .amdhsa_group_segment_fixed_size 0")
        e("  .amdhsa_kernarg_size 72")
        e("  .amdhsa_user_sgpr_count 2")
        e("  .amdhsa_user_sgpr_kernarg_segment_ptr 1")
        e("  .amdhsa_system_sgpr_workgroup_id_x 1")
        e(".end_amdhsa_kernel")
        return "\n".join(self.lines) + "\n"

    def store_stamps(self, final):
        e = self.e
        e("  s_mul_i32 s52, s2, %d" % self.W)
        e("  s_add_u32 s52, s52, s3")
        e("  s_lshl_b32 s52, s52, 6")
        e("  s_add_u32 s52, s52, 0x20000000")
        e("  s_add_u32 s54, s20, s52")
        e("  s_addc_u32 s55, s21, 0")
        if not final:
            e("  v_mov_b32 v60, s44"); e("  v_mov_b32 v61, s46"); e("  v_mov_b32 v62, s48"); e("  v_mov_b32 v63, s2")
            e("  v_mov_b32 v3, 0")
            e("  global_store_dwordx4 v3, v[60:63], s[54:55]")
            e("  v_mov_b32 v64, s58")
            e("  global_store_dword v3, v64, s[54:55] offset:48")
            for r in range(60, 68): e("  s_mov_b32 s%d, 0" % r)
        else:
            e("  v_mov_b32 v60, s50")
            e("  s_getreg_b32 s56, hwreg(HW_REG_XCC_ID)")
            e("  s_getreg_b32 s57, hwreg(HW_REG_HW_ID)")
            e("  v_mov_b32 v61, s56"); e("  v_mov_b32 v62, s57"); e("  v_mov_b32 v63, 0"); e("  v_mov_b32 v3, 0")
            e("  global_store_dwordx4 v3, v[60:63], s[54:55] offset:16")
            e("  v_mov_b32 v64, s60"); e("  v_mov_b32 v65, s62"); e("  v_mov_b32 v66, s64"); e("  v_mov_b32 v67, s66")
            e("  global_store_dwordx4 v3, v[64:67], s[54:55] offset:32")

    def merge(self, n, OB, MB, OD, MD):
        e = self.e
        e("  v_mov_b32 v%d, v%d" % (MD, MB))
        for w in range(1, n): e("  v_max_f32 v%d, v%d, v%d" % (MD, MD, MB + 2 * w))
        for w in range(n): e("  v_sub_f32 v%d, v%d, v%d" % (MB + 2 * w, MB + 2 * w, MD))
        if self.kmode == 1:
            for w in range(n): e("  v_mul_f32 v%d, s34, v%d" % (MB + 2 * w, MB + 2 * w))
        for w in range(n): e("  v_exp_f32 v%d, v%d" % (MB + 2 * w, MB + 2 * w))
        e("  s_nop 0")
        e("  v_mul_f32 v%d, v%d, v%d" % (MD + 1, MB, MB + 1))
        for w in range(1, n): e("  v_fmac_f32 v%d, v%d, v%d" % (MD + 1, MB + 2 * w, MB + 2 * w + 1))
        for r in range(4): e("  v_mul_f32 v%d, v%d, v%d" % (OD + r, MB, OB + r))
        for w in range(1, n):
            for r in range(4): e("  v_fmac_f32 v%d, v%d, v%d" % (OD + r, MB + 2 * w, OB + 4 * w + r))

    def final_combine(self, pol):
        e = self.e; S = self.S
        e("  s_mul_i32 s36, s22, %d" % (S * 2048))
        e("  s_add_u32 s40, s20, s36")
        e("  s_addc_u32 s41, s21, 0")
        OB = 76; MB = 76 + 4 * S
        for s in range(S):
            off = s * 2048
            if off + 1024 + 16 <= 4095:
                e("  global_load_dwordx4 v[%d:%d], v1, s[40:41] offset:%d %s" % (OB + 4 * s, OB + 4 * s + 3, off, pol))
                e("  global_load_dwordx2 v[%d:%d], v1, s[40:41] offset:%d %s" % (MB + 2 * s, MB + 2 * s + 1, off + 1024, pol))
            else:
                e("  v_add_u32 v3, %d, v1" % off)
                e("  global_load_dwordx4 v[%d:%d], v3, s[40:41] %s" % (OB + 4 * s, OB + 4 * s + 3, pol))
                e("  global_load_dwordx2 v[%d:%d], v3, s[40:41] offset:1024 %s" % (MB + 2 * s, MB + 2 * s + 1, pol))
        e("  s_waitcnt vmcnt(0)")
        if self.stamp: e("  s_memrealtime s[66:67]")
        self.merge(S, OB, MB, 4, 8)
        e("  v_rcp_f32 v9, v9")
        e("  s_nop 0")
        for r in range(4): e("  v_mul_f32 v%d, v%d, v9" % (4 + r, 4 + r))
        e("  v_cvt_pk_bf16_f32 v4, v4, v5")
        e("  v_cvt_pk_bf16_f32 v5, v6, v7")
        e("  s_lshl_b32 s36, s22, 9")
        e("  s_add_u32 s16, s16, s36")
        e("  s_addc_u32 s17, s17, 0")
        e("  v_lshrrev_b32 v2, 1, v1             ; lane*8")
        e("  global_store_dwordx2 v2, v[4:5], s[16:17]")

if __name__ == "__main__":
    ap = argparse.ArgumentParser()
    ap.add_argument("-o", default="cdna_kernels/%s.s" % NAME)
    ap.add_argument("--S", type=int, default=2)
    ap.add_argument("--W", type=int, default=4)
    ap.add_argument("--R", type=int, default=8)
    ap.add_argument("--pol", default="nt")
    ap.add_argument("--map", type=int, default=0)
    ap.add_argument("--stamp", action="store_true")
    ap.add_argument("--ldsmin", type=int, default=98304)
    ap.add_argument("--amap", default="")
    ap.add_argument("--kmode", type=int, default=1)
    ap.add_argument("--kpol", default=None)
    ap.add_argument("--wv", type=int, default=63)
    ap.add_argument("--fine", type=int, default=0)
    ap.add_argument("--boost", default="")
    ap.add_argument("--kfine", type=int, default=0)
    ap.add_argument("--trace", action="store_true")
    ap.add_argument("--fast", action="store_true")
    ap.add_argument("--early", action="store_true")
    ap.add_argument("--ss", type=int, default=-1)
    ap.add_argument("--grp", type=int, default=-1)
    ap.add_argument("--wpat", default="")
    ap.add_argument("--kboost", default="")
    ap.add_argument("--bstages", default="")
    ap.add_argument("--outpol", default="")
    a = ap.parse_args()
    am = parse_amap(a.amap)
    if am is not None and a.ss >= 0: am["ss"] = 1 << a.ss
    g = Gen2(S=a.S, W=a.W, R=a.R, pol=a.pol, mapmode=a.map, stamp=a.stamp, ldsmin=a.ldsmin, amap=am, kmode=a.kmode, kpol=a.kpol, wv=a.wv, fine=a.fine, boost=tuple(int(x) for x in a.boost.split(',')) if a.boost else None, kfine=a.kfine, trace=a.trace, fast=a.fast, early=a.early, outpol=a.outpol, grp=a.grp, bstages=[tuple(int(y) for y in x.split(':')) for x in a.bstages.split(',')] if a.bstages else None, kboost=tuple(int(x) for x in a.kboost.split(',')) if a.kboost else None, wpat=[int(x) for x in a.wpat.split(',')] if a.wpat else None)
    open(a.o, "w").write(g.build())
    print("wrote", a.o, "vgprs", g.nvgpr(), "lds", g.lds)
```

```python
import sys, math, argparse
sys.path.insert(0, "gen")
from gen import NAME, hexf, C_SCALE

HEADER = open("cdna_kernels/%s.s.ref" % NAME).read().split("; Override launch")[0]

class Gen4:
    V_LOFF = 1
    V_VOFF = 2
    V_Q = 4
    V_MASK = 20; V_O = 24; V_SA = 28; V_P = 32; V_B = 36; V_D = 36
    V_M, V_NM, V_L, V_TM, V_T1, V_ST, V_LA, V_LANE = 52, 53, 54, 55, 56, 57, 58, 59
    V_C = 60
    V_VT = 64; V_SB = 68; RING = 72
    NT = 64

    def __init__(self, win=5, kb=4, vb=8, deep=8, stamp=False, lds=98304, vgpr=0, prefetch=False, early2=True, align=True, tau=0, l0=150, adeep=0):
        self.tau, self.l0, self.adeep = tau, l0, adeep
        self.win, self.kb, self.vb, self.deep = win, kb, vb, deep
        self.stamp, self.lds, self.vgpr, self.prefetch, self.early2, self.align = stamp, lds, vgpr, prefetch, early2, align
        self.EP = 4 * self.NT * 128
        self.lines = []
        self.uid = 0

    def e(self, s): self.lines.append(s)
    def slot(self, j): return self.RING + 16 * j

    def qwait(self):
        self.uid += 1
        if self.adeep:
            self.e("  s_waitcnt vmcnt(%d)" % (min(self.deep, 8) - 1))
            self.e("  s_cbranch_vccnz L_w%d" % self.uid)
            self.e("  s_waitcnt vmcnt(%d)" % (self.adeep - 1))
            self.e("  s_cbranch_scc1 L_w%d" % self.uid)
            self.e("  s_waitcnt vmcnt(%d)" % (self.win - 1))
            self.e("L_w%d:" % self.uid)
            return
        self.e("  s_waitcnt vmcnt(%d)" % (min(self.deep, 8) - 1))
        self.e("  s_cbranch_vccnz L_w%d" % self.uid)
        self.e("  s_waitcnt vmcnt(%d)" % (self.win - 1))
        self.e("L_w%d:" % self.uid)

    def load(self, reg, soff, r):
        self.e("  buffer_load_dwordx4 v[%d:%d], v%d, s[24:27], %s offen offset:%d nt" % (reg, reg + 3, self.V_LOFF, soff, r * 1024))

    def reduce_dpp(self, d, dst):
        self.e("  v_mul_f32_dpp v%d, v%d, v%d quad_perm:[0,0,0,0] row_mask:0xf bank_mask:0xf" % (dst, d, self.V_C))
        for s in range(1, 4):
            self.e("  v_fmac_f32_dpp v%d, v%d, v%d quad_perm:[%d,%d,%d,%d] row_mask:0xf bank_mask:0xf" % (dst, d + s, self.V_C, s, s, s, s))

    def xlane(self, reg, op):
        t1 = self.V_T1
        for sw in ("v_permlane16_swap_b32", "v_permlane32_swap_b32"):
            self.e("  v_mov_b32 v%d, v%d" % (t1, reg))
            self.e("  s_nop 1")
            self.e("  %s v%d, v%d" % (sw, reg, t1))
            self.e("  s_nop 1")
            self.e("  %s v%d, v%d, v%d" % (op, reg, reg, t1))

    def ktile(self, j):
        s = self.V_SA if j == 0 else self.V_SB
        soff = "s69" if j == 0 else "s72"
        k, q, d, tm = self.slot(j), self.V_Q, self.V_D, self.V_TM
        for r in range(4):
            self.qwait()
            self.e("  v_mfma_f32_16x16x32_bf16 v[%d:%d], v[%d:%d], v[%d:%d], 0" % (d + 4 * r, d + 4 * r + 3, k + 4 * r, k + 4 * r + 3, q, q + 3))
            self.load(k + 4 * r, soff, r)
        self.e("  s_nop 0")
        for r in range(4):
            if r == 3: self.e("  s_nop 0")
            self.reduce_dpp(d + 4 * r, s + r)
        self.e("  v_max3_f32 v%d, v%d, v%d, v%d" % (tm, s, s + 1, tm))
        self.e("  v_max3_f32 v%d, v%d, v%d, v%d" % (tm, s + 2, s + 3, tm))
        if self.tau and j == 1: self.e("  s_waitcnt lgkmcnt(0)")
        self.e("  ds_write_b128 v%d, v[%d:%d] offset:%d" % (self.V_LA, s, s + 3, j * 128))

    def vtile(self, j):
        s = self.V_SA if j == 0 else self.V_SB
        sn = self.V_SB if j == 0 else self.V_SA
        soff = "s69" if j == 0 else "s72"
        p, b, o, mk, l, v = self.V_P, self.V_B, self.V_O, self.V_MASK, self.V_L, self.slot(j)
        self.e("  ds_read_b128 v[%d:%d], v%d offset:%d" % (sn, sn + 3, self.V_LA, (j + 1) * 128))
        self.e("  s_waitcnt lgkmcnt(1)")
        if self.tau and j == 0: self.e("  s_memrealtime s[80:81]")
        for r in range(4): self.e("  v_add_f32 v%d, v%d, v%d" % (p + r, s + r, self.V_NM))
        for r in range(4): self.e("  v_exp_f32 v%d, v%d" % (p + r, p + r))
        self.e("  s_nop 0")
        for r in range(4): self.e("  v_add_f32 v%d, v%d, v%d" % (l, l, p + r))
        for r in range(4): self.e("  v_cvt_pk_bf16_f32 v%d, v%d, v%d" % (p + r, p + r, p + r))
        for r in range(4):
            for rr in range(4):
                self.e("  v_and_b32 v%d, v%d, v%d" % (b + 4 * r + rr, p + r, mk + rr))
        for r in range(4):
            self.qwait()
            self.e("  v_mfma_f32_16x16x32_bf16 v[%d:%d], v[%d:%d], v[%d:%d], v[%d:%d]" %
                   (o, o + 3, v + 4 * r, v + 4 * r + 3, b + 4 * r, b + 4 * r + 3, o, o + 3))
            self.load(v + 4 * r, soff, r)

    def build(self):
        e = self.e
        lane = self.V_LANE
        NT = self.NT
        K = NAME + "_kernel"
        e(HEADER.rstrip("\n"))
        e("; @launch grid=(256,1,1) block=(256,1,1) lds=%d" % self.lds)
        e('.amdgcn_target "amdgcn-amd-amdhsa--gfx950"')
        e(".text")
        e(".globl %s" % K)
        e(".p2align 8")
        e(".type %s,@function" % K)
        e("%s:" % K)
        e("  s_load_dwordx8 s[4:11], s[0:1], 0")
        e("  s_load_dwordx8 s[12:19], s[0:1], 32")
        e("  s_load_dwordx2 s[20:21], s[0:1], 64     ; ws")
        e("  s_cmp_ge_u32 s2, 256")
        e("  s_cbranch_scc1 L_exit")
        if self.stamp or self.tau: e("  s_memrealtime s[44:45]")
        e("  v_lshrrev_b32 v3, 6, v0")
        e("  v_and_b32 v%d, 63, v0" % lane)
        e("  v_readfirstlane_b32 s3, v3              ; wave")
        e("  v_lshrrev_b32 v60, 4, v%d               ; g" % lane)
        e("  v_and_b32 v61, 15, v%d                  ; i / n" % lane)
        e("  v_and_b32 v63, 3, v61")
        e("  v_lshlrev_b32 v63, 4, v63")
        e("  v_lshl_add_u32 v63, v60, 6, v63         ; g*64 + s*16")
        e("  v_lshrrev_b32 v62, 2, v61")
        e("  v_lshl_add_u32 v%d, v62, 8, v63         ; K voffset = kk*256 + g*64 + s*16" % self.V_LOFF)
        e("  v_lshrrev_b32 v62, 3, v61               ; head")
        e("  v_lshl_add_u32 v3, v62, 8, v63          ; Q voffset")
        e("  s_lshr_b32 s22, s2, 1                   ; pair")
        e("  s_and_b32 s23, s2, 1                    ; split")
        e("  s_lshl_b32 s35, s22, 9")
        e("  s_lshl_b32 s37, s23, 15")
        e("  s_lshl_b32 s38, s3, 12")
        e("  s_add_u32 s37, s37, s38")
        e("  s_lshl_b32 s36, s22, 21")
        e("  s_add_u32 s36, s36, s37")
        e("  s_sub_u32 s26, 0x200000, s37")
        e("  s_mov_b32 s27, 0x20000")
        e("  s_mov_b32 s69, 0")
        e("  s_mov_b32 s72, 16384")
        e("  s_waitcnt lgkmcnt(0)")
        e("  s_add_u32 s4, s4, s35")
        e("  s_addc_u32 s5, s5, 0")
        e("  s_add_u32 s24, s6, s36")
        e("  s_addc_u32 s25, s7, 0")
        e("  global_load_dwordx4 v[%d:%d], v3, s[4:5]" % (self.V_Q, self.V_Q + 3))
        e("  s_and_b32 s25, s25, 0xffff")
        for j in range(2):
            for r in range(4): self.load(self.slot(j) + 4 * r, "s69" if j == 0 else "s72", r)
        e("  s_mov_b32 s69, 65536")
        e("  s_add_u32 s28, s8, s36")
        e("  s_addc_u32 s29, s9, 0")
        e("  s_and_b32 s29, s29, 0xffff")
        e("  s_mov_b32 s30, s26")
        e("  s_mov_b32 s31, 0x20000")
        if self.prefetch:
            e("  s_cmp_lg_u32 s3, 3")
            e("  s_cbranch_scc1 L_nopf")
            e("  s_getpc_b64 s[74:75]")
            e("L_pc:")
            e("  v_lshlrev_b32 v12, 7, v%d" % lane)
            e("  v_min_u32 v12, L_code_end-L_pc-4, v12")
            e("  global_load_dword v13, v12, s[74:75]")
            e("L_nopf:")
        e("  v_lshlrev_b32 v%d, 4, v%d" % (self.V_VOFF, lane))
        e("  v_lshl_add_u32 v62, v60, 1, v62         ; g*2 + head")
        e("  v_lshlrev_b32 v62, 4, v62")
        e("  s_lshl_b32 s35, s3, 13")
        e("  v_add_u32 v%d, s35, v62" % self.V_LA)
        e("  v_and_b32 v62, 1, v61")
        e("  v_cmp_eq_u32 vcc, 1, v62")
        e("  v_mov_b32 v62, 0xffff")
        e("  v_mov_b32 v63, 0xffff0000")
        e("  v_cndmask_b32 v62, v62, v63, vcc")
        e("  v_bfe_u32 v63, v61, 1, 2")
        for rr in range(4):
            e("  v_cmp_eq_u32 vcc, %d, v63" % rr)
            e("  s_nop 1")
            e("  v_cndmask_b32 v%d, 0, v62, vcc" % (self.V_MASK + rr))
        e("  v_mov_b32 v%d, %s" % (self.V_C, hexf(C_SCALE)))
        e("  v_mov_b32 v%d, 0xff800000" % self.V_TM)
        e("  v_mov_b32 v%d, 0xff800000" % self.V_ST)
        for r in range(4): e("  v_mov_b32 v%d, 0" % (self.V_VT + r))
        e("  s_or_b32 s38, s23, s3")
        e("  s_cmp_lg_u32 s38, 0")
        e("  s_cbranch_scc1 L_notree")
        e("  s_lshl_b32 s36, s22, 8")
        e("  s_add_u32 s10, s10, s36")
        e("  s_addc_u32 s11, s11, 0")
        e("  s_add_u32 s12, s12, s36")
        e("  s_addc_u32 s13, s13, 0")
        e("  s_lshr_b32 s36, s22, 4                  ; batch")
        e("  s_lshl_b32 s37, s36, 1")
        e("  s_and_b32 s37, s37, 0xfffffffc")
        e("  s_load_dword s39, s[14:15], s37")
        e("  v_and_b32 v62, 0xff, v3                 ; g*64 + s*16")
        e("  global_load_dwordx4 v[%d:%d], v62, s[10:11]" % (self.V_B + 4, self.V_B + 7))
        e("  v_lshrrev_b32 v62, 4, v%d" % lane)
        e("  v_and_b32 v63, 7, v%d" % lane)
        e("  v_lshlrev_b32 v63, 1, v63")
        e("  v_lshl_add_u32 v63, v62, 6, v63")
        for r in range(4): e("  global_load_ushort v%d, v63, s[12:13] offset:%d" % (self.V_VT + r, r * 16))
        e("  s_and_b32 s36, s36, 1")
        e("  s_lshl_b32 s36, s36, 4")
        e("  s_waitcnt vmcnt(0) lgkmcnt(0)")
        e("  s_lshr_b32 s39, s39, s36")
        e("  s_lshl_b32 s39, s39, 16")
        e("  v_mfma_f32_16x16x32_bf16 v[%d:%d], v[%d:%d], v[%d:%d], 0" % (self.V_D, self.V_D + 3, self.V_B + 4, self.V_B + 7, self.V_Q, self.V_Q + 3))
        e("  v_sub_f32 v62, 1.0, s39")
        e("  v_mul_f32 v62, %s, v62" % hexf(-1e9 * math.log2(math.e)))
        for r in range(4): e("  v_lshlrev_b32 v%d, 16, v%d" % (self.V_VT + r, self.V_VT + r))
        e("  s_nop 3")
        self.reduce_dpp(self.V_D, self.V_SA)
        e("  v_add_f32 v%d, v%d, v62" % (self.V_ST, self.V_SA))
        e("L_notree:")
        if self.stamp:
            e("  s_waitcnt vmcnt(7)")
            e("  s_memrealtime s[46:47]")
            e("  s_waitcnt lgkmcnt(0)")
        NI = NT // 2
        e("  s_mov_b32 s33, %d" % NI)
        if self.tau:
            e("  s_mov_b32 s78, %d" % (self.l0 * 16))
            e("  s_waitcnt lgkmcnt(0)")
            e("  s_mov_b32 s80, s44")
        if self.align: e(".p2align 6")
        e("L_k:")
        if self.tau and not self.adeep:
            e("  s_sub_u32 s79, s80, s44")
            e("  s_lshl_b32 s79, s79, 4")
            e("  s_cmp_gt_u32 s79, s78")
            e("  s_cselect_b64 vcc, -1, 0")
            e("  s_add_u32 s78, s78, %d" % self.tau)
            e("  s_cmp_gt_u32 s33, %d" % (NI - self.kb))
            e("  s_cselect_b64 vcc, -1, vcc")
            e("  s_memrealtime s[80:81]")
        elif self.tau:
            e("  s_sub_u32 s79, s80, s44")
            e("  s_lshl_b32 s79, s79, 4")
            e("  s_add_u32 s78, s78, %d" % self.tau)
            e("  s_cmp_gt_u32 s33, %d" % (NI - self.kb))
            e("  s_cselect_b64 vcc, -1, 0")
            e("  s_memrealtime s[80:81]")
        else:
            e("  s_cmp_gt_u32 s33, %d" % (NI - self.kb))
            e("  s_cselect_b64 vcc, -1, 0")
        e("  s_cmp_lg_u32 s33, 1")
        e("  s_cbranch_scc1 L_k_go")
        e("  s_mov_b32 s24, s28")
        e("  s_mov_b32 s25, s29")
        e("  s_mov_b32 s69, 0")
        e("  v_mov_b32 v%d, v%d" % (self.V_LOFF, self.V_VOFF))
        e("L_k_go:")
        e("  s_add_u32 s72, s69, 16384")
        if self.adeep: e("  s_cmp_gt_u32 s79, s78")
        self.ktile(0)
        self.ktile(1)
        e("  s_add_u32 s69, s69, 65536")
        e("  v_add_u32 v%d, 256, v%d" % (self.V_LA, self.V_LA))
        e("  s_sub_u32 s33, s33, 1")
        e("  s_cmp_lg_u32 s33, 0")
        e("  s_cbranch_scc1 L_k")
        if self.stamp: e("  s_memrealtime s[58:59]")
        tm, t1, m = self.V_TM, self.V_T1, self.V_M
        e("  v_subrev_u32 v%d, %d, v%d" % (self.V_LA, NT * 128, self.V_LA))
        e("  s_waitcnt lgkmcnt(0)")
        e("  ds_read_b128 v[%d:%d], v%d" % (self.V_SA, self.V_SA + 3, self.V_LA))
        self.xlane(tm, "v_max_f32")
        e("  v_max_f32 v%d, v%d, v%d" % (m, tm, self.V_ST))
        e("  v_sub_f32 v%d, 0, v%d" % (self.V_NM, m))
        e("  v_sub_f32 v%d, v%d, v%d" % (t1, self.V_ST, m))
        e("  v_exp_f32 v%d, v%d" % (t1, t1))
        e("  v_cmp_gt_u32 vcc, 16, v%d" % lane)
        e("  s_nop 1")
        e("  v_cndmask_b32 v%d, 0, v%d, vcc" % (self.V_L, t1))
        for r in range(4): e("  v_mul_f32 v%d, v%d, v%d" % (self.V_O + r, t1, self.V_VT + r))
        e("  s_mov_b32 s33, %d" % NI)
        if self.align: e(".p2align 6")
        e("L_v:")
        if self.tau and not self.adeep:
            e("  s_sub_u32 s79, s80, s44")
            e("  s_lshl_b32 s79, s79, 4")
            e("  s_cmp_gt_u32 s79, s78")
            e("  s_cselect_b64 vcc, -1, 0")
            e("  s_add_u32 s78, s78, %d" % self.tau)
            e("  s_cmp_le_u32 s33, %d" % self.vb)
            e("  s_cselect_b64 vcc, -1, vcc")
        elif self.tau:
            e("  s_sub_u32 s79, s80, s44")
            e("  s_lshl_b32 s79, s79, 4")
            e("  s_add_u32 s78, s78, %d" % self.tau)
            e("  s_cmp_le_u32 s33, %d" % self.vb)
            e("  s_cselect_b64 vcc, -1, 0")
        else:
            e("  s_cmp_le_u32 s33, %d" % self.vb)
            e("  s_cselect_b64 vcc, -1, 0")
        e("  s_add_u32 s72, s69, 16384")
        if self.adeep: e("  s_cmp_gt_u32 s79, s78")
        self.vtile(0)
        self.vtile(1)
        e("  s_add_u32 s69, s69, 65536")
        e("  v_add_u32 v%d, 256, v%d" % (self.V_LA, self.V_LA))
        e("  s_sub_u32 s33, s33, 1")
        e("  s_cmp_lg_u32 s33, 0")
        e("  s_cbranch_scc1 L_v")
        if self.stamp:
            e("  s_memrealtime s[48:49]")
            e("  s_waitcnt lgkmcnt(0)")
            self.store_stamps(False)
        W = 4
        e("  s_lshr_b32 s36, s22, 1")
        e("  s_lshl_b32 s36, s36, 2")
        e("  s_and_b32 s37, s22, 1")
        e("  s_lshl_b32 s37, s37, 4")
        e("  v_mov_b32 v12, s36")
        e("  v_mov_b32 v13, 0")
        e("  s_cmp_lg_u32 s3, 0")
        e("  s_cbranch_scc1 L_nocheck")
        e("  s_mov_b64 exec, 1")
        e("  global_atomic_add v14, v12, v13, s[18:19] sc0")
        e("  s_mov_b64 exec, -1")
        e("L_nocheck:")
        l = self.V_L
        self.xlane(l, "v_add_f32")
        e("  v_lshrrev_b32 v60, 4, v%d" % lane)
        e("  v_and_b32 v61, 15, v%d" % lane)
        e("  v_lshrrev_b32 v62, 3, v61")
        e("  v_lshlrev_b32 v63, 3, v62               ; head*8")
        e("  v_lshlrev_b32 v62, 9, v62")
        e("  v_lshl_add_u32 v62, v60, 7, v62")
        e("  v_and_b32 v61, 7, v61")
        e("  v_lshl_add_u32 v62, v61, 2, v62")
        e("  s_lshl_b32 s35, s3, 10")
        e("  s_add_u32 s35, s35, %d" % self.EP)
        e("  v_add_u32 v62, s35, v62")
        for r in range(4): e("  ds_write_b32 v62, v%d offset:%d" % (self.V_O + r, r * 32))
        e("  s_lshl_b32 s35, s3, 4")
        e("  s_add_u32 s35, s35, %d" % (self.EP + W * 1024))
        e("  v_add_u32 v63, s35, v63")
        e("  v_mov_b32 v60, v%d" % m)
        e("  v_mov_b32 v61, v%d" % l)
        e("  ds_write_b64 v63, v[60:61]")
        e("  s_lshl_b32 s42, s2, 11")
        e("  s_add_u32 s40, s20, s42")
        e("  s_addc_u32 s41, s21, 0")
        e("  s_xor_b32 s42, s42, 2048")
        e("  s_add_u32 s76, s20, s42")
        e("  s_addc_u32 s77, s21, 0")
        e("  v_lshlrev_b32 v1, 4, v%d                ; lane*16" % lane)
        e("  s_mov_b32 s43, 0")
        if self.early2:
            e("  s_cmp_lg_u32 s3, 0")
            e("  s_cbranch_scc1 L_bar")
            e("  s_waitcnt vmcnt(0)")
            e("  v_readfirstlane_b32 s43, v14")
            e("  s_nop 3")
            e("  s_lshr_b32 s43, s43, s37")
            e("  s_and_b32 s43, s43, 0xffff")
            e("  s_cmp_eq_u32 s43, 0")
            e("  s_cbranch_scc1 L_bar")
            e("  global_load_dwordx4 v[96:99], v1, s[76:77] sc1")
            e("  global_load_dwordx2 v[100:101], v1, s[76:77] offset:1024 sc1")
            e("L_bar:")
        e("  s_waitcnt lgkmcnt(0)")
        e("  s_barrier")
        e("  s_cmp_lg_u32 s3, 0")
        e("  s_cbranch_scc1 L_end")
        if self.stamp: e("  s_memrealtime s[60:61]")
        e("  v_lshrrev_b32 v2, 5, v%d" % lane)
        e("  v_lshlrev_b32 v2, 3, v2                 ; head*8")
        OB, MB = 72, 72 + 4 * W
        if not self.early2: e("  s_waitcnt vmcnt(1)")
        for w in range(W): e("  ds_read_b64 v[%d:%d], v2 offset:%d" % (MB + 2 * w, MB + 2 * w + 1, self.EP + W * 1024 + w * 16))
        for w in range(W): e("  ds_read_b128 v[%d:%d], v1 offset:%d" % (OB + 4 * w, OB + 4 * w + 3, self.EP + w * 1024))
        e("  s_waitcnt lgkmcnt(0)")
        e("  v_max3_f32 v8, v%d, v%d, v%d" % (MB, MB + 2, MB + 4))
        e("  v_max_f32 v8, v8, v%d" % (MB + 6))
        for w in range(W): e("  v_sub_f32 v%d, v%d, v8" % (MB + 2 * w, MB + 2 * w))
        for w in range(W): e("  v_exp_f32 v%d, v%d" % (MB + 2 * w, MB + 2 * w))
        e("  s_nop 0")
        e("  v_mul_f32 v9, v%d, v%d" % (MB, MB + 1))
        for w in range(1, W): e("  v_fmac_f32 v9, v%d, v%d" % (MB + 2 * w, MB + 2 * w + 1))
        for r in range(4): e("  v_mul_f32 v%d, v%d, v%d" % (4 + r, MB, OB + r))
        for w in range(1, W):
            for r in range(4): e("  v_fmac_f32 v%d, v%d, v%d" % (4 + r, MB + 2 * w, OB + 4 * w + r))
        if self.early2:
            e("  s_cmp_lg_u32 s43, 0")
            e("  s_cbranch_scc1 L_combine")
        e("  v_mov_b32 v10, 0")
        e("  v_mov_b32 v11, 0")
        e("  global_store_dwordx4 v1, v[4:7], s[40:41] sc1")
        e("  global_store_dwordx4 v1, v[8:11], s[40:41] offset:1024 sc1")
        if not self.early2:
            e("  s_waitcnt vmcnt(2)")
            e("  v_readfirstlane_b32 s43, v14")
            e("  s_nop 3")
            e("  s_lshr_b32 s43, s43, s37")
            e("  s_and_b32 s43, s43, 0xffff")
            e("  s_cmp_lg_u32 s43, 0")
            e("  s_cbranch_scc1 L_fetch")
        e("  s_waitcnt vmcnt(0)")
        if self.stamp: e("  s_memrealtime s[62:63]")
        e("  s_lshl_b32 s42, 1, s37")
        e("  v_mov_b32 v13, s42")
        e("  s_mov_b64 exec, 1")
        e("  global_atomic_add v14, v12, v13, s[18:19] sc0     ; publish")
        e("  s_waitcnt vmcnt(0)")
        if self.stamp: e("  s_memrealtime s[64:65]")
        e("  v_readfirstlane_b32 s43, v14")
        e("  s_mov_b64 exec, -1")
        e("  s_nop 3")
        e("  s_lshr_b32 s43, s43, s37")
        e("  s_and_b32 s43, s43, 0xffff")
        e("  s_cmp_eq_u32 s43, 0")
        e("  s_cbranch_scc1 L_end")
        e("L_fetch:")
        e("  global_load_dwordx4 v[96:99], v1, s[76:77] sc1")
        e("  global_load_dwordx2 v[100:101], v1, s[76:77] offset:1024 sc1")
        e("L_combine:")
        e("  s_lshl_b32 s36, s22, 9")
        e("  s_add_u32 s16, s16, s36")
        e("  s_addc_u32 s17, s17, 0")
        e("  v_lshrrev_b32 v2, 1, v1                 ; lane*8")
        e("  s_waitcnt vmcnt(0)")
        if self.stamp: e("  s_memrealtime s[66:67]")
        e("  v_max_f32 v10, v8, v100")
        e("  v_sub_f32 v8, v8, v10")
        e("  v_sub_f32 v100, v100, v10")
        e("  v_exp_f32 v8, v8")
        e("  v_exp_f32 v100, v100")
        e("  s_nop 0")
        e("  v_mul_f32 v9, v8, v9")
        e("  v_mul_f32 v101, v100, v101")
        e("  v_add_f32 v9, v9, v101")
        e("  v_rcp_f32 v9, v9")
        for r in range(4):
            e("  v_mul_f32 v%d, v8, v%d" % (4 + r, 4 + r))
            e("  v_mul_f32 v%d, v100, v%d" % (96 + r, 96 + r))
        for r in range(4): e("  v_add_f32 v%d, v%d, v%d" % (4 + r, 4 + r, 96 + r))
        for r in range(4): e("  v_mul_f32 v%d, v%d, v9" % (4 + r, 4 + r))
        e("  v_cvt_pk_bf16_f32 v4, v4, v5")
        e("  v_cvt_pk_bf16_f32 v5, v6, v7")
        e("  global_store_dwordx2 v2, v[4:5], s[16:17]")
        e("L_end:")
        if self.stamp:
            e("  s_cmp_lg_u32 s3, 0")
            e("  s_cbranch_scc1 L_exit")
            e("  s_waitcnt vmcnt(0)")
            e("  s_memrealtime s[50:51]")
            e("  s_waitcnt lgkmcnt(0)")
            self.store_stamps(True)
        e("L_exit:")
        e("  s_endpgm")
        e("L_code_end:")
        nv = max(104, self.vgpr)
        e('.section .rodata,"a"')
        e(".p2align 6")
        e(".amdhsa_kernel %s" % K)
        e("  .amdhsa_next_free_vgpr %d" % nv)
        e("  .amdhsa_next_free_sgpr 88")
        e("  .amdhsa_accum_offset %d" % min(256, (nv + 3) // 4 * 4))
        e("  .amdhsa_group_segment_fixed_size 0")
        e("  .amdhsa_kernarg_size 72")
        e("  .amdhsa_user_sgpr_count 2")
        e("  .amdhsa_user_sgpr_kernarg_segment_ptr 1")
        e("  .amdhsa_system_sgpr_workgroup_id_x 1")
        e(".end_amdhsa_kernel")
        return "\n".join(self.lines) + "\n"

    def pf_len(self):
        return 3712

    def store_stamps(self, final):
        e = self.e
        e("  s_lshl_b32 s52, s2, 2")
        e("  s_add_u32 s52, s52, s3")
        e("  s_lshl_b32 s52, s52, 6")
        e("  s_add_u32 s52, s52, 0x20000000")
        e("  s_add_u32 s54, s20, s52")
        e("  s_addc_u32 s55, s21, 0")
        if not final:
            e("  v_mov_b32 v104, s44"); e("  v_mov_b32 v105, s46"); e("  v_mov_b32 v106, s48"); e("  v_mov_b32 v107, s2")
            e("  v_mov_b32 v3, 0")
            e("  global_store_dwordx4 v3, v[104:107], s[54:55]")
            e("  v_mov_b32 v108, s58")
            e("  global_store_dword v3, v108, s[54:55] offset:48")
            for r in range(60, 68): e("  s_mov_b32 s%d, 0" % r)
        else:
            e("  v_mov_b32 v60, s50")
            e("  s_getreg_b32 s56, hwreg(HW_REG_XCC_ID)")
            e("  s_getreg_b32 s57, hwreg(HW_REG_HW_ID)")
            e("  v_mov_b32 v61, s56"); e("  v_mov_b32 v62, s57"); e("  v_mov_b32 v63, 0"); e("  v_mov_b32 v3, 0")
            e("  global_store_dwordx4 v3, v[60:63], s[54:55] offset:16")
            e("  v_mov_b32 v64, s60"); e("  v_mov_b32 v65, s62"); e("  v_mov_b32 v66, s64"); e("  v_mov_b32 v67, s66")
            e("  global_store_dwordx4 v3, v[64:67], s[54:55] offset:32")

if __name__ == "__main__":
    ap = argparse.ArgumentParser()
    ap.add_argument("-o", default="cdna_kernels/%s.s" % NAME)
    ap.add_argument("--win", type=int, default=5)
    ap.add_argument("--kb", type=int, default=4)
    ap.add_argument("--vb", type=int, default=8)
    ap.add_argument("--deep", type=int, default=8)
    ap.add_argument("--stamp", action="store_true")
    ap.add_argument("--lds", type=int, default=98304)
    ap.add_argument("--vgpr", type=int, default=0)
    ap.add_argument("--prefetch", action="store_true")
    ap.add_argument("--noearly2", action="store_true")
    ap.add_argument("--noalign", action="store_true")
    ap.add_argument("--tau", type=float, default=0)
    ap.add_argument("--l0", type=int, default=150)
    ap.add_argument("--adeep", type=int, default=0)
    a = ap.parse_args()
    g = Gen4(win=a.win, kb=a.kb, vb=a.vb, deep=a.deep, stamp=a.stamp, lds=a.lds, vgpr=max(a.vgpr, 112 if a.stamp else 0), prefetch=a.prefetch, early2=not a.noearly2, align=not a.noalign, tau=int(round(a.tau*1600)), l0=a.l0, adeep=a.adeep)
    open(a.o, "w").write(g.build())
    print("wrote", a.o)
```

```python
import struct, sys, math, argparse
sys.path.insert(0, "gen")
from gen import NAME, HEADER, f32bits, hexf, C_SCALE, parse_amap

class Gen2:
    V_KOFF, V_VOFF = 1, 2
    V_Q = 4; V_MASK = 20; V_O = 24; V_SA = 28; V_P = 32; V_B = 36
    V_M, V_NMC, V_L, V_TM, V_T1, V_ST, V_LA, V_LANE = 52, 53, 54, 55, 56, 57, 58, 59
    V_VT = 64; V_SB = 68; V_VR = 72; RING = 76
    V_D = 36
    V_C = 60

    def __init__(self, S=2, W=4, R=8, pol="nt", mapmode=0, stamp=False, ldsmin=98304, amap=None, kmode=1, kpol=None, wv=63, fine=0, boost=None, kboost=None, kfine=0, trace=False, fast=False, early=False, outpol='', grp=-1, wpat=None, bstages=None, touch=0):
        self.touch = touch
        self.bstages = bstages
        self.wpat = wpat
        self.grp = grp
        self.early = early
        self.outpol = outpol
        self.fast = fast
        self.trace = trace
        self.kfine = kfine
        self.boost = boost
        self.kboost = kboost
        self.depth = fine
        self.fine = fine
        self.wv = wv
        self.kmode = kmode
        self.kpol = pol if kpol is None else kpol
        self.S, self.W, self.R, self.pol, self.mapmode, self.stamp = S, W, R, pol, mapmode, stamp
        self.NWG = 128 * S
        self.KEYS_WG = 8192 // S
        self.WGBYTES = self.KEYS_WG * 256
        self.NT = self.KEYS_WG // 16 // W
        assert self.NT % R == 0 and R % 2 == 0
        lw = int(math.log2(W))
        if amap is None:
            amap = dict(gs=1024, ws=4096, fields=[(0, int(math.log2(self.NT)), 12 + lw)])
        self.amap = amap
        self.SC_BYTES = W * self.NT * 128
        self.EP = self.SC_BYTES
        self.lds = max(self.EP + W * 1024 + W * 16, ldsmin)
        self.lines = []

    def e(self, s): self.lines.append(s)
    def slot(self, j): return self.RING + 16 * j
    def nvgpr(self): return max(self.RING + 16 * self.R, 76 + 6 * self.W + 2, 76 + 6 * self.S + 4)

    def calc_off(self):
        first = True
        for (lo, n, pos) in self.amap["fields"]:
            dst = "s68" if first else "s71"
            self.e("  s_bfe_u32 %s, s70, 0x%x" % (dst, (n << 16) | lo))
            if pos: self.e("  s_lshl_b32 %s, %s, %d" % (dst, dst, pos))
            if not first: self.e("  s_or_b32 s68, s68, s71")
            first = False
        self.e("  s_add_u32 s70, s70, 1")

    def issue_k(self, j):
        if self.fine:
            for r in range(4): self.issue_k1(j, r)
            return
        k = self.slot(j)
        gs = self.amap["gs"]
        for t in range(4):
            if self.kmode == 1:
                self.e("  buffer_load_dwordx4 v[%d:%d], v%d, s[24:27], s68 offen offset:%d %s" %
                   (k + 4 * t, k + 4 * t + 3, self.V_KOFF, t * 64, self.kpol))
            else:
                assert gs * 3 <= 3072
                self.e("  buffer_load_dwordx4 v[%d:%d], v%d, s[24:27], s68 offen offset:%d %s" %
                   (k + 4 * t, k + 4 * t + 3, self.V_KOFF, t * gs, self.kpol))

    def issue_v(self, j):
        v = self.slot(j); gs = self.amap["gs"]
        for r in range(4):
            if gs * 3 <= 3072:
                self.e("  buffer_load_dwordx4 v[%d:%d], v%d, s[28:31], s68 offen offset:%d %s" %
                       (v + 4 * r, v + 4 * r + 3, self.V_VOFF, r * gs, self.pol))
            else:
                self.e("  buffer_load_dwordx4 v[%d:%d], v%d, s[28:31], s68 offen %s" %
                       (v + 4 * r, v + 4 * r + 3, self.V_VR + r, self.pol))

    def issue_k1(self, j, r):
        k = self.slot(j); gs = self.amap["gs"]
        if gs * 3 <= 3072:
            self.e("  buffer_load_dwordx4 v[%d:%d], v%d, s[24:27], s68 offen offset:%d %s" %
               (k + 4 * r, k + 4 * r + 3, self.V_KOFF, r * gs, self.kpol))
        else:
            self.e("  buffer_load_dwordx4 v[%d:%d], v%d, s[24:27], s68 offen %s" %
               (k + 4 * r, k + 4 * r + 3, 16 + r, self.kpol))
    def issue_v1(self, j, r):
        v = self.slot(j); gs = self.amap["gs"]
        if gs * 3 <= 3072:
            self.e("  buffer_load_dwordx4 v[%d:%d], v%d, s[28:31], s68 offen offset:%d %s" %
               (v + 4 * r, v + 4 * r + 3, self.V_VOFF, r * gs, self.pol))
        else:
            self.e("  buffer_load_dwordx4 v[%d:%d], v%d, s[28:31], s68 offen %s" %
               (v + 4 * r, v + 4 * r + 3, self.V_VR + r, self.pol))

    def qk(self, k, s):
        q = self.V_Q
        for t in range(4):
            c = "0" if t == 0 else "v[%d:%d]" % (s, s + 3)
            self.e("  v_mfma_f32_16x16x32_bf16 v[%d:%d], v[%d:%d], v[%d:%d], %s" %
                   (s, s + 3, k + 4 * t, k + 4 * t + 3, q + 4 * t, q + 4 * t + 3, c))

    def ktile(self, j, nxt):
        R = self.R
        s = self.V_SA if j % 2 == 0 else self.V_SB
        tm = self.V_TM
        if self.fine:
            assert self.kmode == 2
            k = self.slot(j); q = self.V_Q; d = self.V_D
            self.calc_off()
            for r in range(4):
                self.e("  s_waitcnt vmcnt(%d)" % min(self.depth - 1 + self.wd(r), 4 * R - 1))
                self.e("  v_mfma_f32_16x16x32_bf16 v[%d:%d], v[%d:%d], v[%d:%d], 0" %
                       (d + 4 * r, d + 4 * r + 3, k + 4 * r, k + 4 * r + 3, q, q + 3))
                if nxt == 'k': self.issue_k1(j, r)
                else: self.issue_v1(j, r)
            self.e("  s_nop 0")
            for r in range(4):
                if r == 3: self.e("  s_nop 0")
                self.reduce_dpp(self.V_D + 4 * r, s + r)
            self.e("  s_nop 0")
            self.e("  v_max3_f32 v%d, v%d, v%d, v%d" % (tm, s, s + 1, tm))
            self.e("  v_max3_f32 v%d, v%d, v%d, v%d" % (tm, s + 2, s + 3, tm))
            self.e("  ds_write_b128 v%d, v[%d:%d] offset:%d" % (self.V_LA, s, s + 3, j * 128))
            self.trace_pt(12)
            return
        self.e("  s_waitcnt vmcnt(%d)" % min(self.wv, 4 * (R - 1)))
        if self.kmode == 1:
            self.qk(self.slot(j), s)
        else:
            k = self.slot(j); q = self.V_Q; d = self.V_D
            for r in range(4):
                self.e("  v_mfma_f32_16x16x32_bf16 v[%d:%d], v[%d:%d], v[%d:%d], 0" %
                       (d + 4 * r, d + 4 * r + 3, k + 4 * r, k + 4 * r + 3, q, q + 3))
        self.calc_off()
        if nxt == 'k': self.issue_k(j)
        else: self.issue_v(j)
        self.e("  s_nop 1")
        if self.kmode == 2:
            for r in range(4):
                self.reduce_dpp(self.V_D + 4 * r, s + r)
            self.e("  s_nop 0")
        self.e("  v_max3_f32 v%d, v%d, v%d, v%d" % (tm, s, s + 1, tm))
        self.e("  v_max3_f32 v%d, v%d, v%d, v%d" % (tm, s + 2, s + 3, tm))
        self.e("  ds_write_b128 v%d, v[%d:%d] offset:%d" % (self.V_LA, s, s + 3, j * 128))

    def wd(self, r):
        if self.wpat is None or self.depth != self.fine: return 0
        return self.wpat[r]

    def trace_pt(self, vreg):
        if not self.trace: return
        self.e("  s_memrealtime s[74:75]")
        self.e("  s_waitcnt lgkmcnt(0)")
        self.e("  s_mov_b32 m0, s72")
        self.e("  v_writelane_b32 v%d, s74, m0" % vreg)
        self.e("  s_add_u32 s72, s72, 1")

    def reduce_dpp(self, d, dst):
        self.e("  v_mul_f32_dpp v%d, v%d, v%d quad_perm:[0,0,0,0] row_mask:0xf bank_mask:0xf" % (dst, d, self.V_C))
        for s in range(1, 4):
            self.e("  v_fmac_f32_dpp v%d, v%d, v%d quad_perm:[%d,%d,%d,%d] row_mask:0xf bank_mask:0xf" %
                   (dst, d + s, self.V_C, s, s, s, s))

    def vtile(self, j, nxt, wait, last):
        s = self.V_SA if j % 2 == 0 else self.V_SB
        sn = self.V_SB if j % 2 == 0 else self.V_SA
        p, b, o, mk, l, nmc = self.V_P, self.V_B, self.V_O, self.V_MASK, self.V_L, self.V_NMC
        v = self.slot(j)
        if not last:
            self.e("  ds_read_b128 v[%d:%d], v%d offset:%d" % (sn, sn + 3, self.V_LA, (j + 1) * 128))
            self.e("  s_waitcnt lgkmcnt(1)")
        else:
            self.e("  s_waitcnt lgkmcnt(0)")
        for r in range(4):
            if self.kmode == 1:
                self.e("  v_fma_f32 v%d, v%d, s34, v%d" % (p + r, s + r, nmc))
            else:
                self.e("  v_add_f32 v%d, v%d, v%d" % (p + r, s + r, nmc))
        for r in range(4):
            self.e("  v_exp_f32 v%d, v%d" % (p + r, p + r))
        self.e("  s_nop 0")
        for r in range(4):
            self.e("  v_add_f32 v%d, v%d, v%d" % (l, l, p + r))
        for r in range(4):
            self.e("  v_cvt_pk_bf16_f32 v%d, v%d, v%d" % (p + r, p + r, p + r))
        for r in range(4):
            for rr in range(4):
                self.e("  v_and_b32 v%d, v%d, v%d" % (b + 4 * r + rr, p + r, mk + rr))
        if self.fine:
            if nxt: self.calc_off()
            for r in range(4):
                w = (4 * self.R - 1) if nxt else (wait + 3 - r)
                self.e("  s_waitcnt vmcnt(%d)" % min(self.depth - 1 + self.wd(r), w))
                self.e("  v_mfma_f32_16x16x32_bf16 v[%d:%d], v[%d:%d], v[%d:%d], v[%d:%d]" %
                       (o, o + 3, v + 4 * r, v + 4 * r + 3, b + 4 * r, b + 4 * r + 3, o, o + 3))
                if nxt: self.issue_v1(j, r)
            self.trace_pt(13)
            return
        self.e("  s_waitcnt vmcnt(%d)" % min(self.wv, wait))
        for r in range(4):
            self.e("  v_mfma_f32_16x16x32_bf16 v[%d:%d], v[%d:%d], v[%d:%d], v[%d:%d]" %
                   (o, o + 3, v + 4 * r, v + 4 * r + 3, b + 4 * r, b + 4 * r + 3, o, o + 3))
        if nxt:
            self.calc_off()
            self.issue_v(j)

    def build(self):
        S, W, R, NT = self.S, self.W, self.R, self.NT
        e = self.e
        lane = self.V_LANE
        e(HEADER.rstrip("\n"))
        e("; @launch grid=(%d,1,1) block=(%d,1,1) lds=%d" % (self.NWG, 64 * W, self.lds))
        e('.amdgcn_target "amdgcn-amd-amdhsa--gfx950"')
        e(".text")
        e(".globl %s_kernel" % NAME)
        e(".p2align 8")
        e(".type %s_kernel,@function" % NAME)
        e("%s_kernel:" % NAME)
        e("  s_cmp_ge_u32 s2, %d" % self.NWG)
        e("  s_cbranch_scc1 L_exit")
        if self.stamp: e("  s_memrealtime s[44:45]")
        e("  s_load_dwordx16 s[4:19], s[0:1], 0")
        e("  s_load_dwordx2 s[20:21], s[0:1], 64")
        e("  v_and_b32 v%d, 63, v0" % lane)
        e("  v_lshrrev_b32 v3, 6, v0")
        e("  s_nop 0")
        e("  v_readfirstlane_b32 s3, v3")
        lg = int(math.log2(S))
        if self.mapmode == 0:
            e("  s_and_b32 s22, s2, 127"); e("  s_lshr_b32 s23, s2, 7")
        elif self.mapmode == 1:
            e("  s_lshr_b32 s22, s2, %d" % lg); e("  s_and_b32 s23, s2, %d" % (S - 1))
        elif self.mapmode == 2:
            e("  s_and_b32 s22, s2, 7"); e("  s_lshl_b32 s22, s22, 4")
            e("  s_lshr_b32 s23, s2, %d" % (3 + lg)); e("  s_add_u32 s22, s22, s23")
            e("  s_lshr_b32 s23, s2, 3"); e("  s_and_b32 s23, s23, %d" % (S - 1))
        elif self.mapmode == 3:
            e("  s_lshr_b32 s23, s2, %d" % (3 + lg))
            e("  s_add_u32 s22, s2, s23"); e("  s_and_b32 s22, s22, 7")
            e("  s_lshl_b32 s23, s23, 3"); e("  s_add_u32 s22, s22, s23")
            e("  s_lshr_b32 s23, s2, 3"); e("  s_and_b32 s23, s23, %d" % (S - 1))
        e("  v_lshrrev_b32 v60, 4, v%d            ; g" % lane)
        e("  v_and_b32 v61, 15, v%d               ; i / n" % lane)
        e("  v_lshlrev_b32 v%d, 4, v%d" % (self.V_VOFF, lane))
        if self.kmode == 1:
            e("  v_and_b32 v62, 3, v61")
            e("  v_mul_u32_u24 v62, %d, v62          ; (i&3)*gs" % self.amap["gs"])
            e("  v_lshrrev_b32 v63, 2, v61")
            e("  v_lshlrev_b32 v63, 8, v63           ; (i>>2)*256")
            e("  v_add_u32 v62, v62, v63")
            e("  v_lshlrev_b32 v63, 4, v60           ; g*16")
        else:
            e("  v_lshrrev_b32 v62, 2, v61")
            e("  v_lshlrev_b32 v62, 8, v62           ; kk*256")
            e("  v_and_b32 v63, 3, v61               ; s")
            e("  v_lshlrev_b32 v63, 4, v63           ; s*16")
            e("  v_lshl_add_u32 v63, v60, 6, v63     ; g*64 + s*16")
        e("  v_add_u32 v%d, v62, v63" % self.V_KOFF)
        e("  v_lshrrev_b32 v62, 3, v61")
        e("  v_lshlrev_b32 v62, 8, v62")
        e("  v_add_u32 v3, v62, v63              ; Q voffset")
        for r in range(4):
            e("  v_add_u32 v%d, %d, v%d" % (self.V_VR + r, r * self.amap["gs"], self.V_VOFF))
        if self.kmode == 2:
            for r in range(4):
                e("  v_add_u32 v%d, %d, v%d" % (16 + r, r * self.amap["gs"], self.V_KOFF))
        e("  v_lshrrev_b32 v62, 3, v61           ; h")
        e("  v_lshl_add_u32 v62, v60, 1, v62     ; g*2+h")
        e("  v_lshlrev_b32 v62, 4, v62")
        e("  s_mul_i32 s36, s3, %d" % (NT * 128))
        e("  v_add_u32 v%d, s36, v62" % self.V_LA)
        e("  v_and_b32 v62, 1, v61")
        e("  v_cmp_eq_u32 vcc, 1, v62")
        e("  v_mov_b32 v62, 0xffff")
        e("  v_mov_b32 v63, 0xffff0000")
        e("  v_cndmask_b32 v62, v62, v63, vcc")
        e("  v_bfe_u32 v63, v61, 1, 2             ; (n&7)>>1")
        for rr in range(4):
            e("  v_cmp_eq_u32 vcc, %d, v63" % rr)
            e("  s_nop 1")
            e("  v_cndmask_b32 v%d, 0, v62, vcc" % (self.V_MASK + rr))
        e("  s_mov_b32 s34, %s" % hexf(C_SCALE))
        e("  s_mov_b32 s35, %s" % hexf(-C_SCALE))
        e("  v_mov_b32 v%d, 0xff800000" % self.V_TM)
        e("  v_mov_b32 v%d, 0xff800000" % self.V_ST)
        for r in range(4):
            e("  v_mov_b32 v%d, 0" % (self.V_VT + r))
        e("  s_waitcnt lgkmcnt(0)")
        e("  s_lshl_b32 s36, s22, 9")
        e("  s_add_u32 s4, s4, s36")
        e("  s_addc_u32 s5, s5, 0")
        for t in range(4 if self.kmode == 1 else 1):
            e("  global_load_dwordx4 v[%d:%d], v3, s[4:5] offset:%d" % (self.V_Q + 4 * t, self.V_Q + 4 * t + 3, t * 64))
        if self.grp >= 0:
            G = self.grp
            e("  s_lshr_b32 s36, s2, %d" % (G + 1))
            e("  s_lshl_b32 s36, s36, %d" % (21 + G))
            e("  s_and_b32 s37, s2, %d" % ((1 << (G + 1)) - 1))
            e("  s_mul_i32 s37, s37, %d" % self.amap["ss"])
            e("  s_add_u32 s36, s36, s37")
        else:
            e("  s_lshl_b32 s36, s22, 21")
            e("  s_mul_i32 s37, s23, %d" % self.amap.get("ss", self.WGBYTES))
            e("  s_add_u32 s36, s36, s37")
        e("  s_mul_i32 s37, s3, %d" % self.amap["ws"])
        e("  s_add_u32 s36, s36, s37")
        e("  s_add_u32 s24, s6, s36")
        e("  s_addc_u32 s25, s7, 0")
        e("  s_and_b32 s25, s25, 0xffff")
        if self.grp >= 0:
            e("  s_mov_b32 s26, %d" % (1 << (21 + self.grp)))
            e("  s_and_b32 s27, s2, %d" % ((1 << (self.grp + 1)) - 1))
            e("  s_mul_i32 s27, s27, %d" % self.amap["ss"])
            e("  s_sub_u32 s26, s26, s27")
            e("  s_sub_u32 s26, s26, s37")
        elif "ss" in self.amap:
            e("  s_mov_b32 s26, 0x200000")
            e("  s_mul_i32 s27, s23, %d" % self.amap["ss"])
            e("  s_sub_u32 s26, s26, s27")
            e("  s_sub_u32 s26, s26, s37")
        else:
            e("  s_sub_u32 s26, %d, s37" % self.WGBYTES)
        e("  s_mov_b32 s27, 0x20000")
        e("  s_add_u32 s28, s8, s36")
        e("  s_addc_u32 s29, s9, 0")
        e("  s_and_b32 s29, s29, 0xffff")
        e("  s_mov_b32 s30, s26")
        e("  s_mov_b32 s31, 0x20000")
        e("  s_or_b32 s38, s23, s3")
        e("  s_cmp_lg_u32 s38, 0")
        e("  s_cbranch_scc1 L_notree_issue")
        e("  s_lshl_b32 s36, s22, 8              ; pair*256")
        e("  s_add_u32 s10, s10, s36")
        e("  s_addc_u32 s11, s11, 0")
        e("  s_add_u32 s12, s12, s36")
        e("  s_addc_u32 s13, s13, 0")
        if self.kmode == 1:
            e("  v_lshlrev_b32 v62, 4, v60           ; g*16")
            for t in range(4):
                e("  global_load_dwordx4 v[%d:%d], v62, s[10:11] offset:%d" % (self.V_B + 4 * t, self.V_B + 4 * t + 3, t * 64))
        else:
            e("  v_and_b32 v63, 3, v61")
            e("  v_lshlrev_b32 v63, 4, v63")
            e("  v_lshl_add_u32 v62, v60, 6, v63     ; g*64 + s*16")
            e("  global_load_dwordx4 v[%d:%d], v62, s[10:11]" % (self.V_B + 4, self.V_B + 7))
        e("  v_and_b32 v63, 7, v61")
        e("  v_lshlrev_b32 v63, 1, v63")
        e("  v_lshl_add_u32 v63, v60, 6, v63")
        for r in range(4):
            e("  global_load_ushort v%d, v63, s[12:13] offset:%d" % (self.V_VT + r, r * 16))
        e("  s_lshr_b32 s36, s22, 4")
        e("  s_lshl_b32 s37, s36, 1")
        e("  s_and_b32 s37, s37, 0xfffffffc")
        e("  s_load_dword s39, s[14:15], s37")
        e("L_notree_issue:")
        e("  s_mov_b32 s70, 0")
        for j in range(R):
            self.calc_off()
            self.issue_k(j)
        if self.touch:
            e("  v_mov_b32 v12, 0")
            if self.touch & 1:
                e("  s_mov_b64 exec, 1")
                e("  buffer_load_dword v13, v12, s[28:31], 0 offen")
                e("  s_mov_b64 exec, -1")
            if self.touch & 2:
                e("  s_cmp_lg_u32 s3, 1")
                e("  s_cbranch_scc1 L_notouch")
                e("  s_lshl_b32 s42, s2, 7")
                e("  s_add_u32 s42, s42, 0x100000")
                e("  s_add_u32 s72, s20, s42")
                e("  s_addc_u32 s73, s21, 0")
                e("  s_lshl_b32 s42, s22, 9")
                e("  s_add_u32 s74, s16, s42")
                e("  s_addc_u32 s75, s17, 0")
                e("  s_lshr_b32 s42, s22, 1")
                e("  s_lshl_b32 s42, s42, 2")
                e("  v_mov_b32 v14, s42")
                e("  s_mov_b64 exec, 1")
                e("  global_load_dword v13, v12, s[72:73]")
                e("  global_load_dword v13, v12, s[74:75]")
                e("  global_atomic_add v14, v12, s[18:19]")
                e("  s_mov_b64 exec, -1")
                e("L_notouch:")
        e("  s_cmp_lg_u32 s38, 0")
        e("  s_cbranch_scc1 L_notree")
        e("  s_waitcnt lgkmcnt(0)")
        e("  s_and_b32 s36, s36, 1")
        e("  s_lshl_b32 s36, s36, 4")
        e("  s_lshr_b32 s39, s39, s36")
        e("  s_lshl_b32 s39, s39, 16")
        e("  s_waitcnt vmcnt(%d)" % (4 * R))
        if self.kmode == 1:
            self.qk(self.V_B, self.V_SA)
            e("  s_nop 7")
            e("  v_sub_f32 v62, 1.0, s39")
            e("  v_mul_f32 v62, %s, v62" % hexf(-1e9 * math.sqrt(128.0)))
            e("  v_add_f32 v%d, v%d, v62" % (self.V_ST, self.V_SA))
        else:
            e("  v_mov_b32 v%d, s34" % self.V_C)
            e("  v_mfma_f32_16x16x32_bf16 v[%d:%d], v[%d:%d], v[%d:%d], 0" % (self.V_D, self.V_D + 3, self.V_B + 4, self.V_B + 7, self.V_Q, self.V_Q + 3))
            e("  s_nop 7")
            self.reduce_dpp(self.V_D, self.V_SA)
            e("  v_sub_f32 v62, 1.0, s39")
            e("  v_mul_f32 v62, %s, v62" % hexf(-1e9 * math.log2(math.e)))
            e("  v_add_f32 v%d, v%d, v62" % (self.V_ST, self.V_SA))
        for r in range(4):
            e("  v_lshlrev_b32 v%d, 16, v%d" % (self.V_VT + r, self.V_VT + r))
        e("L_notree:")
        if self.kmode == 2:
            e("  v_mov_b32 v%d, s34" % self.V_C)
        if self.stamp:
            e("  s_waitcnt vmcnt(%d)" % (4 * (R - 1)))
            e("  s_memrealtime s[46:47]")
            e("  s_waitcnt lgkmcnt(0)")
        if self.trace: e("  s_mov_b32 s72, 0")
        if self.kfine: self.depth = self.kfine
        n1 = NT // R - 1
        kdep = self.depth
        kb = self.kboost[0] if self.kboost else 0
        for (cnt, dep, lab) in ((kb, self.kboost[1] if self.kboost else 0, "L_p1a"), (n1 - kb, kdep, "L_p1")):
            if cnt <= 0: continue
            self.depth = dep
            e("  s_mov_b32 s33, %d" % cnt)
            e("%s:" % lab)
            for j in range(R): self.ktile(j, 'k')
            e("  v_add_u32 v%d, %d, v%d" % (self.V_LA, R * 128, self.V_LA))
            e("  s_sub_u32 s33, s33, 1")
            e("  s_cmp_lg_u32 s33, 0")
            e("  s_cbranch_scc1 %s" % lab)
        self.depth = kdep
        e("  s_mov_b32 s70, 0")
        for j in range(R): self.ktile(j, 'v')
        if self.trace: e("  s_mov_b32 s72, 0")
        if self.stamp:
            e("  s_memrealtime s[58:59]")
        tm, t1, m = self.V_TM, self.V_T1, self.V_M
        e("  v_subrev_u32 v%d, %d, v%d" % (self.V_LA, (NT - R) * 128, self.V_LA))
        e("  v_mov_b32 v%d, v%d" % (t1, tm))
        e("  s_nop 1")
        e("  v_permlane16_swap_b32 v%d, v%d" % (tm, t1))
        e("  s_nop 1")
        e("  v_max_f32 v%d, v%d, v%d" % (tm, tm, t1))
        e("  v_mov_b32 v%d, v%d" % (t1, tm))
        e("  s_nop 1")
        e("  v_permlane32_swap_b32 v%d, v%d" % (tm, t1))
        e("  s_nop 1")
        e("  v_max_f32 v%d, v%d, v%d" % (tm, tm, t1))
        e("  v_max_f32 v%d, v%d, v%d" % (m, tm, self.V_ST))
        if self.kmode == 1:
            e("  v_mul_f32 v%d, s35, v%d" % (self.V_NMC, m))
            e("  v_fma_f32 v%d, v%d, s34, v%d" % (t1, self.V_ST, self.V_NMC))
        else:
            e("  v_sub_f32 v%d, 0, v%d" % (self.V_NMC, m))
            e("  v_add_f32 v%d, v%d, v%d" % (t1, self.V_ST, self.V_NMC))
        e("  v_exp_f32 v%d, v%d" % (t1, t1))
        e("  v_cmp_gt_u32 vcc, 16, v%d" % lane)
        e("  s_nop 1")
        e("  v_cndmask_b32 v%d, 0, v%d, vcc" % (self.V_L, t1))
        for r in range(4):
            e("  v_mul_f32 v%d, v%d, v%d" % (self.V_O + r, t1, self.V_VT + r))
        e("  s_waitcnt lgkmcnt(0)")
        e("  ds_read_b128 v[%d:%d], v%d" % (self.V_SA, self.V_SA + 3, self.V_LA))
        stages = list(self.bstages) if self.bstages else ([(self.boost[0], self.boost[1])] if self.boost else [])
        nboost = sum(c for c, d in stages) - (1 if stages else 0)
        plan = [(n1 - nboost, self.fine)]
        for i, (c, d) in enumerate(stages):
            plan.append((c - (1 if i == len(stages) - 1 else 0), d))
        for i, (cnt, dep) in enumerate(plan):
            if cnt <= 0: continue
            lab = "L_p2_%d" % i
            self.depth = dep
            e("  s_mov_b32 s33, %d" % cnt)
            e("%s:" % lab)
            for j in range(R): self.vtile(j, True, 4 * (R - 1), False)
            e("  v_add_u32 v%d, %d, v%d" % (self.V_LA, R * 128, self.V_LA))
            e("  s_sub_u32 s33, s33, 1")
            e("  s_cmp_lg_u32 s33, 0")
            e("  s_cbranch_scc1 %s" % lab)
        self.depth = stages[-1][1] if stages else self.fine
        for j in range(R): self.vtile(j, False, 4 * (R - 1 - j), j == R - 1)
        if self.stamp:
            e("  s_memrealtime s[48:49]")
            e("  s_waitcnt lgkmcnt(0)")
            self.store_stamps(False)
        if self.trace:
            e("  s_mul_i32 s52, s2, %d" % self.W)
            e("  s_add_u32 s52, s52, s3")
            e("  s_lshl_b32 s52, s52, 9")
            e("  s_add_u32 s52, s52, 0x20100000")
            e("  s_add_u32 s54, s20, s52")
            e("  s_addc_u32 s55, s21, 0")
            e("  v_lshlrev_b32 v14, 2, v%d" % lane)
            e("  global_store_dword v14, v12, s[54:55]")
            e("  global_store_dword v14, v13, s[54:55] offset:256")
        if self.fast and self.early:
            e("  s_lshr_b32 s36, s22, 1")
            e("  s_lshl_b32 s36, s36, 2")
            e("  v_mov_b32 v12, s36")
            e("  v_mov_b32 v13, 0")
            e("  s_cmp_lg_u32 s3, 0")
            e("  s_cbranch_scc1 L_noearly")
            e("  s_mov_b64 exec, 1")
            e("  global_atomic_add v14, v12, v13, s[18:19] sc0")
            e("  s_mov_b64 exec, -1")
            e("L_noearly:")
        l = self.V_L
        e("  v_mov_b32 v%d, v%d" % (t1, l))
        e("  s_nop 1")
        e("  v_permlane16_swap_b32 v%d, v%d" % (l, t1))
        e("  s_nop 1")
        e("  v_add_f32 v%d, v%d, v%d" % (l, l, t1))
        e("  v_mov_b32 v%d, v%d" % (t1, l))
        e("  s_nop 1")
        e("  v_permlane32_swap_b32 v%d, v%d" % (l, t1))
        e("  s_nop 1")
        e("  v_add_f32 v%d, v%d, v%d" % (l, l, t1))
        e("  v_lshrrev_b32 v60, 4, v%d" % lane)
        e("  v_and_b32 v61, 15, v%d" % lane)
        e("  v_lshrrev_b32 v62, 3, v61")
        e("  v_lshlrev_b32 v62, 9, v62")
        e("  v_lshl_add_u32 v62, v60, 7, v62")
        e("  v_and_b32 v63, 7, v61")
        e("  v_lshl_add_u32 v62, v63, 2, v62")
        e("  s_lshl_b32 s36, s3, 10")
        e("  s_add_u32 s36, s36, %d" % self.EP)
        e("  v_add_u32 v62, s36, v62")
        for r in range(4):
            e("  ds_write_b32 v62, v%d offset:%d" % (self.V_O + r, r * 32))
        e("  v_lshrrev_b32 v63, 3, v61")
        e("  v_lshlrev_b32 v63, 3, v63")
        e("  s_lshl_b32 s36, s3, 4")
        e("  s_add_u32 s36, s36, %d" % (self.EP + W * 1024))
        e("  v_add_u32 v63, s36, v63")
        e("  v_mov_b32 v60, v%d" % m)
        e("  v_mov_b32 v61, v%d" % l)
        e("  ds_write_b64 v63, v[60:61]")
        if self.fast and self.early:
            e("  s_waitcnt lgkmcnt(0)")
        else:
            e("  s_waitcnt vmcnt(0) lgkmcnt(0)")
        e("  s_barrier")
        e("  s_cmp_lg_u32 s3, 0")
        e("  s_cbranch_scc1 L_end")
        if self.stamp: e("  s_memrealtime s[60:61]")
        e("  s_lshr_b32 s36, s22, 1")
        e("  s_lshl_b32 s36, s36, 2")
        e("  s_and_b32 s37, s22, 1")
        e("  s_lshl_b32 s37, s37, 4")
        e("  v_mov_b32 v12, s36")
        if self.fast and not self.early:
            e("  v_mov_b32 v13, 0")
            e("  s_mov_b64 exec, 1")
            e("  global_atomic_add v14, v12, v13, s[18:19] sc0")
            e("  s_mov_b64 exec, -1")
        e("  v_lshlrev_b32 v1, 4, v%d             ; lane*16" % lane)
        e("  v_lshrrev_b32 v2, 5, v%d" % lane)
        e("  v_lshlrev_b32 v2, 3, v2              ; h*8")
        e("  v_add_u32 v2, %d, v2" % (self.EP + W * 1024))
        e("  v_add_u32 v3, %d, v1" % self.EP)
        OB, MB = 76, 76 + 4 * W
        for w in range(W):
            e("  ds_read_b64 v[%d:%d], v2 offset:%d" % (MB + 2 * w, MB + 2 * w + 1, w * 16))
        for w in range(W):
            e("  ds_read_b128 v[%d:%d], v3 offset:%d" % (OB + 4 * w, OB + 4 * w + 3, w * 1024))
        e("  s_mul_i32 s42, s22, %d" % S)
        e("  s_add_u32 s43, s42, s23")
        e("  s_lshl_b32 s43, s43, 11")
        e("  s_add_u32 s40, s20, s43")
        e("  s_addc_u32 s41, s21, 0")
        if self.fast:
            assert S == 2
            e("  s_xor_b32 s43, s43, 2048")
            e("  s_add_u32 s72, s20, s43")
            e("  s_addc_u32 s73, s21, 0")
        e("  s_waitcnt lgkmcnt(0)")
        self.merge(W, OB, MB, 4, 8)
        e("  v_mov_b32 v10, 0")
        e("  v_mov_b32 v11, 0")
        e("  global_store_dwordx4 v1, v[4:7], s[40:41] sc1")
        e("  global_store_dwordx4 v1, v[8:11], s[40:41] offset:1024 sc1")
        if self.fast:
            e("  s_waitcnt vmcnt(2)")
            e("  v_readfirstlane_b32 s43, v14")
            e("  s_nop 3")
            e("  s_lshr_b32 s43, s43, s37")
            e("  s_and_b32 s43, s43, 0xff")
            e("  s_cmp_lg_u32 s43, 0")
            e("  s_cbranch_scc1 L_combine")
        e("  s_waitcnt vmcnt(0)")
        if self.stamp: e("  s_memrealtime s[62:63]")
        e("  s_lshl_b32 s42, 1, s37")
        e("  v_mov_b32 v13, s42")
        e("  s_mov_b64 exec, 1")
        e("  global_atomic_add v14, v12, v13, s[18:19] sc0")
        e("  s_waitcnt vmcnt(0)")
        if self.stamp: e("  s_memrealtime s[64:65]")
        e("  v_readfirstlane_b32 s43, v14")
        e("  s_mov_b64 exec, -1")
        e("  s_nop 3")
        e("  s_lshr_b32 s43, s43, s37")
        e("  s_and_b32 s43, s43, 0xff")
        e("  s_cmp_lg_u32 s43, %d" % (S - 1))
        e("  s_cbranch_scc1 L_end")
        if self.fast:
            e("L_combine:")
            e("  global_load_dwordx4 v[80:83], v1, s[72:73] sc1")
            e("  global_load_dwordx2 v[86:87], v1, s[72:73] offset:1024 sc1")
            for r in range(4): e("  v_mov_b32 v%d, v%d" % (76 + r, 4 + r))
            e("  v_mov_b32 v84, v8")
            e("  v_mov_b32 v85, v9")
            e("  s_lshl_b32 s36, s22, 9")
            e("  s_add_u32 s16, s16, s36")
            e("  s_addc_u32 s17, s17, 0")
            e("  v_lshrrev_b32 v2, 1, v1             ; lane*8")
            e("  s_waitcnt vmcnt(0)")
            if self.stamp: e("  s_memrealtime s[66:67]")
            e("  v_max_f32 v8, v84, v86")
            e("  v_sub_f32 v84, v84, v8")
            e("  v_sub_f32 v86, v86, v8")
            if self.kmode == 1:
                e("  v_mul_f32 v84, s34, v84"); e("  v_mul_f32 v86, s34, v86")
            e("  v_exp_f32 v84, v84")
            e("  v_exp_f32 v86, v86")
            e("  s_nop 0")
            e("  v_mul_f32 v85, v84, v85")
            e("  v_mul_f32 v87, v86, v87")
            e("  v_add_f32 v9, v85, v87")
            e("  v_rcp_f32 v9, v9")
            for r in range(4):
                e("  v_mul_f32 v%d, v84, v%d" % (76 + r, 76 + r))
                e("  v_mul_f32 v%d, v86, v%d" % (80 + r, 80 + r))
            for r in range(4):
                e("  v_add_f32 v%d, v%d, v%d" % (4 + r, 76 + r, 80 + r))
            for r in range(4): e("  v_mul_f32 v%d, v%d, v9" % (4 + r, 4 + r))
            e("  v_cvt_pk_bf16_f32 v4, v4, v5")
            e("  v_cvt_pk_bf16_f32 v5, v6, v7")
            e("  global_store_dwordx2 v2, v[4:5], s[16:17] %s" % self.outpol)
        else:
            self.final_combine("sc1")
        e("L_end:")
        if self.stamp:
            e("  s_cmp_lg_u32 s3, 0")
            e("  s_cbranch_scc1 L_exit")
            e("  s_waitcnt vmcnt(0)")
            e("  s_memrealtime s[50:51]")
            e("  s_waitcnt lgkmcnt(0)")
            self.store_stamps(True)
        e("L_exit:")
        e("  s_endpgm")
        e('.section .rodata,"a"')
        e(".p2align 6")
        e(".amdhsa_kernel %s_kernel" % NAME)
        nv = self.nvgpr()
        e("  .amdhsa_next_free_vgpr %d" % nv)
        e("  .amdhsa_next_free_sgpr 80")
        e("  .amdhsa_accum_offset %d" % ((nv + 3) // 4 * 4))
        e("  .amdhsa_group_segment_fixed_size 0")
        e("  .amdhsa_kernarg_size 72")
        e("  .amdhsa_user_sgpr_count 2")
        e("  .amdhsa_user_sgpr_kernarg_segment_ptr 1")
        e("  .amdhsa_system_sgpr_workgroup_id_x 1")
        e(".end_amdhsa_kernel")
        return "\n".join(self.lines) + "\n"

    def store_stamps(self, final):
        e = self.e
        e("  s_mul_i32 s52, s2, %d" % self.W)
        e("  s_add_u32 s52, s52, s3")
        e("  s_lshl_b32 s52, s52, 6")
        e("  s_add_u32 s52, s52, 0x20000000")
        e("  s_add_u32 s54, s20, s52")
        e("  s_addc_u32 s55, s21, 0")
        if not final:
            e("  v_mov_b32 v60, s44"); e("  v_mov_b32 v61, s46"); e("  v_mov_b32 v62, s48"); e("  v_mov_b32 v63, s2")
            e("  v_mov_b32 v3, 0")
            e("  global_store_dwordx4 v3, v[60:63], s[54:55]")
            e("  v_mov_b32 v64, s58")
            e("  global_store_dword v3, v64, s[54:55] offset:48")
            for r in range(60, 68): e("  s_mov_b32 s%d, 0" % r)
        else:
            e("  v_mov_b32 v60, s50")
            e("  s_getreg_b32 s56, hwreg(HW_REG_XCC_ID)")
            e("  s_getreg_b32 s57, hwreg(HW_REG_HW_ID)")
            e("  v_mov_b32 v61, s56"); e("  v_mov_b32 v62, s57"); e("  v_mov_b32 v63, 0"); e("  v_mov_b32 v3, 0")
            e("  global_store_dwordx4 v3, v[60:63], s[54:55] offset:16")
            e("  v_mov_b32 v64, s60"); e("  v_mov_b32 v65, s62"); e("  v_mov_b32 v66, s64"); e("  v_mov_b32 v67, s66")
            e("  global_store_dwordx4 v3, v[64:67], s[54:55] offset:32")

    def merge(self, n, OB, MB, OD, MD):
        e = self.e
        e("  v_mov_b32 v%d, v%d" % (MD, MB))
        for w in range(1, n): e("  v_max_f32 v%d, v%d, v%d" % (MD, MD, MB + 2 * w))
        for w in range(n): e("  v_sub_f32 v%d, v%d, v%d" % (MB + 2 * w, MB + 2 * w, MD))
        if self.kmode == 1:
            for w in range(n): e("  v_mul_f32 v%d, s34, v%d" % (MB + 2 * w, MB + 2 * w))
        for w in range(n): e("  v_exp_f32 v%d, v%d" % (MB + 2 * w, MB + 2 * w))
        e("  s_nop 0")
        e("  v_mul_f32 v%d, v%d, v%d" % (MD + 1, MB, MB + 1))
        for w in range(1, n): e("  v_fmac_f32 v%d, v%d, v%d" % (MD + 1, MB + 2 * w, MB + 2 * w + 1))
        for r in range(4): e("  v_mul_f32 v%d, v%d, v%d" % (OD + r, MB, OB + r))
        for w in range(1, n):
            for r in range(4): e("  v_fmac_f32 v%d, v%d, v%d" % (OD + r, MB + 2 * w, OB + 4 * w + r))

    def final_combine(self, pol):
        e = self.e; S = self.S
        e("  s_mul_i32 s36, s22, %d" % (S * 2048))
        e("  s_add_u32 s40, s20, s36")
        e("  s_addc_u32 s41, s21, 0")
        OB = 76; MB = 76 + 4 * S
        for s in range(S):
            off = s * 2048
            if off + 1024 + 16 <= 4095:
                e("  global_load_dwordx4 v[%d:%d], v1, s[40:41] offset:%d %s" % (OB + 4 * s, OB + 4 * s + 3, off, pol))
                e("  global_load_dwordx2 v[%d:%d], v1, s[40:41] offset:%d %s" % (MB + 2 * s, MB + 2 * s + 1, off + 1024, pol))
            else:
                e("  v_add_u32 v3, %d, v1" % off)
                e("  global_load_dwordx4 v[%d:%d], v3, s[40:41] %s" % (OB + 4 * s, OB + 4 * s + 3, pol))
                e("  global_load_dwordx2 v[%d:%d], v3, s[40:41] offset:1024 %s" % (MB + 2 * s, MB + 2 * s + 1, pol))
        e("  s_waitcnt vmcnt(0)")
        if self.stamp: e("  s_memrealtime s[66:67]")
        self.merge(S, OB, MB, 4, 8)
        e("  v_rcp_f32 v9, v9")
        e("  s_nop 0")
        for r in range(4): e("  v_mul_f32 v%d, v%d, v9" % (4 + r, 4 + r))
        e("  v_cvt_pk_bf16_f32 v4, v4, v5")
        e("  v_cvt_pk_bf16_f32 v5, v6, v7")
        e("  s_lshl_b32 s36, s22, 9")
        e("  s_add_u32 s16, s16, s36")
        e("  s_addc_u32 s17, s17, 0")
        e("  v_lshrrev_b32 v2, 1, v1             ; lane*8")
        e("  global_store_dwordx2 v2, v[4:5], s[16:17]")

if __name__ == "__main__":
    ap = argparse.ArgumentParser()
    ap.add_argument("-o", default="cdna_kernels/%s.s" % NAME)
    ap.add_argument("--S", type=int, default=2)
    ap.add_argument("--W", type=int, default=4)
    ap.add_argument("--R", type=int, default=8)
    ap.add_argument("--pol", default="nt")
    ap.add_argument("--map", type=int, default=0)
    ap.add_argument("--stamp", action="store_true")
    ap.add_argument("--ldsmin", type=int, default=98304)
    ap.add_argument("--amap", default="")
    ap.add_argument("--kmode", type=int, default=1)
    ap.add_argument("--kpol", default=None)
    ap.add_argument("--wv", type=int, default=63)
    ap.add_argument("--fine", type=int, default=0)
    ap.add_argument("--boost", default="")
    ap.add_argument("--kfine", type=int, default=0)
    ap.add_argument("--trace", action="store_true")
    ap.add_argument("--fast", action="store_true")
    ap.add_argument("--early", action="store_true")
    ap.add_argument("--ss", type=int, default=-1)
    ap.add_argument("--grp", type=int, default=-1)
    ap.add_argument("--wpat", default="")
    ap.add_argument("--kboost", default="")
    ap.add_argument("--bstages", default="")
    ap.add_argument("--touch", type=int, default=0)
    ap.add_argument("--outpol", default="")
    a = ap.parse_args()
    am = parse_amap(a.amap)
    if am is not None and a.ss >= 0: am["ss"] = 1 << a.ss
    g = Gen2(S=a.S, W=a.W, R=a.R, pol=a.pol, mapmode=a.map, stamp=a.stamp, ldsmin=a.ldsmin, amap=am, kmode=a.kmode, kpol=a.kpol, wv=a.wv, fine=a.fine, boost=tuple(int(x) for x in a.boost.split(',')) if a.boost else None, kfine=a.kfine, trace=a.trace, fast=a.fast, early=a.early, outpol=a.outpol, grp=a.grp, touch=a.touch, bstages=[tuple(int(y) for y in x.split(':')) for x in a.bstages.split(',')] if a.bstages else None, kboost=tuple(int(x) for x in a.kboost.split(',')) if a.kboost else None, wpat=[int(x) for x in a.wpat.split(',')] if a.wpat else None)
    open(a.o, "w").write(g.build())
    print("wrote", a.o, "vgprs", g.nvgpr(), "lds", g.lds)
```

```python
import struct, sys, math, argparse
sys.path.insert(0, "gen")
from gen import NAME, HEADER, f32bits, hexf, C_SCALE, parse_amap

class Gen2:
    V_KOFF, V_VOFF = 1, 2
    V_Q = 4; V_MASK = 20; V_O = 24; V_SA = 28; V_P = 32; V_B = 36
    V_M, V_NMC, V_L, V_TM, V_T1, V_ST, V_LA, V_LANE = 52, 53, 54, 55, 56, 57, 58, 59
    V_VT = 64; V_SB = 68; V_VR = 72; RING = 76
    V_D = 36
    V_C = 60

    def __init__(self, S=2, W=4, R=8, pol="nt", mapmode=0, stamp=False, ldsmin=98304, amap=None, kmode=1, kpol=None, wv=63, fine=0, boost=None, kboost=None, kfine=0, trace=False, fast=False, early=False, outpol='', grp=-1, wpat=None, bstages=None, touch=0, trot=None, align=0, treesplit=0, treewave=0):
        self.treesplit = treesplit
        self.treewave = treewave
        self.align = align
        self.trot = trot
        self.touch = touch
        self.bstages = bstages
        self.wpat = wpat
        self.grp = grp
        self.early = early
        self.outpol = outpol
        self.fast = fast
        self.trace = trace
        self.kfine = kfine
        self.boost = boost
        self.kboost = kboost
        self.depth = fine
        self.fine = fine
        self.wv = wv
        self.kmode = kmode
        self.kpol = pol if kpol is None else kpol
        self.S, self.W, self.R, self.pol, self.mapmode, self.stamp = S, W, R, pol, mapmode, stamp
        self.NWG = 128 * S
        self.KEYS_WG = 8192 // S
        self.WGBYTES = self.KEYS_WG * 256
        self.NT = self.KEYS_WG // 16 // W
        assert self.NT % R == 0 and R % 2 == 0
        lw = int(math.log2(W))
        if amap is None:
            amap = dict(gs=1024, ws=4096, fields=[(0, int(math.log2(self.NT)), 12 + lw)])
        self.amap = amap
        self.SC_BYTES = W * self.NT * 128
        self.EP = self.SC_BYTES
        self.lds = max(self.EP + W * 1024 + W * 16, ldsmin)
        self.lines = []

    def e(self, s): self.lines.append(s)
    def slot(self, j): return self.RING + 16 * j
    def nvgpr(self): return max(self.RING + 16 * self.R, 76 + 6 * self.W + 2, 76 + 6 * self.S + 4)

    def calc_off(self):
        first = True
        for (lo, n, pos) in self.amap["fields"]:
            dst = "s68" if first else "s71"
            self.e("  s_bfe_u32 %s, s70, 0x%x" % (dst, (n << 16) | lo))
            if pos: self.e("  s_lshl_b32 %s, %s, %d" % (dst, dst, pos))
            if not first: self.e("  s_or_b32 s68, s68, s71")
            first = False
        self.e("  s_add_u32 s70, s70, 1")

    def issue_k(self, j):
        if self.fine:
            for r in range(4): self.issue_k1(j, r)
            return
        k = self.slot(j)
        gs = self.amap["gs"]
        for t in range(4):
            if self.kmode == 1:
                self.e("  buffer_load_dwordx4 v[%d:%d], v%d, s[24:27], s68 offen offset:%d %s" %
                   (k + 4 * t, k + 4 * t + 3, self.V_KOFF, t * 64, self.kpol))
            else:
                assert gs * 3 <= 3072
                self.e("  buffer_load_dwordx4 v[%d:%d], v%d, s[24:27], s68 offen offset:%d %s" %
                   (k + 4 * t, k + 4 * t + 3, self.V_KOFF, t * gs, self.kpol))

    def issue_v(self, j):
        v = self.slot(j); gs = self.amap["gs"]
        for r in range(4):
            if gs * 3 <= 3072:
                self.e("  buffer_load_dwordx4 v[%d:%d], v%d, s[28:31], s68 offen offset:%d %s" %
                       (v + 4 * r, v + 4 * r + 3, self.V_VOFF, r * gs, self.pol))
            else:
                self.e("  buffer_load_dwordx4 v[%d:%d], v%d, s[28:31], s68 offen %s" %
                       (v + 4 * r, v + 4 * r + 3, self.V_VR + r, self.pol))

    def issue_k1(self, j, r):
        k = self.slot(j); gs = self.amap["gs"]
        if gs * 3 <= 3072:
            self.e("  buffer_load_dwordx4 v[%d:%d], v%d, s[24:27], s68 offen offset:%d %s" %
               (k + 4 * r, k + 4 * r + 3, self.V_KOFF, r * gs, self.kpol))
        else:
            self.e("  buffer_load_dwordx4 v[%d:%d], v%d, s[24:27], s68 offen %s" %
               (k + 4 * r, k + 4 * r + 3, 16 + r, self.kpol))
    def issue_v1(self, j, r):
        v = self.slot(j); gs = self.amap["gs"]
        if gs * 3 <= 3072:
            self.e("  buffer_load_dwordx4 v[%d:%d], v%d, s[28:31], s68 offen offset:%d %s" %
               (v + 4 * r, v + 4 * r + 3, self.V_VOFF, r * gs, self.pol))
        else:
            self.e("  buffer_load_dwordx4 v[%d:%d], v%d, s[28:31], s68 offen %s" %
               (v + 4 * r, v + 4 * r + 3, self.V_VR + r, self.pol))

    def qk(self, k, s):
        q = self.V_Q
        for t in range(4):
            c = "0" if t == 0 else "v[%d:%d]" % (s, s + 3)
            self.e("  v_mfma_f32_16x16x32_bf16 v[%d:%d], v[%d:%d], v[%d:%d], %s" %
                   (s, s + 3, k + 4 * t, k + 4 * t + 3, q + 4 * t, q + 4 * t + 3, c))

    def ktile(self, j, nxt):
        R = self.R
        s = self.V_SA if j % 2 == 0 else self.V_SB
        tm = self.V_TM
        if self.fine:
            assert self.kmode == 2
            k = self.slot(j); q = self.V_Q; d = self.V_D
            self.calc_off()
            for r in range(4):
                self.e("  s_waitcnt vmcnt(%d)" % min(self.depth - 1 + self.wd(r), 4 * R - 1))
                self.e("  v_mfma_f32_16x16x32_bf16 v[%d:%d], v[%d:%d], v[%d:%d], 0" %
                       (d + 4 * r, d + 4 * r + 3, k + 4 * r, k + 4 * r + 3, q, q + 3))
                if nxt == 'k': self.issue_k1(j, r)
                else: self.issue_v1(j, r)
            self.e("  s_nop 0")
            for r in range(4):
                if r == 3: self.e("  s_nop 0")
                self.reduce_dpp(self.V_D + 4 * r, s + r)
            self.e("  s_nop 0")
            self.e("  v_max3_f32 v%d, v%d, v%d, v%d" % (tm, s, s + 1, tm))
            self.e("  v_max3_f32 v%d, v%d, v%d, v%d" % (tm, s + 2, s + 3, tm))
            self.e("  ds_write_b128 v%d, v[%d:%d] offset:%d" % (self.V_LA, s, s + 3, j * 128))
            self.trace_pt(12)
            return
        self.e("  s_waitcnt vmcnt(%d)" % min(self.wv, 4 * (R - 1)))
        if self.kmode == 1:
            self.qk(self.slot(j), s)
        else:
            k = self.slot(j); q = self.V_Q; d = self.V_D
            for r in range(4):
                self.e("  v_mfma_f32_16x16x32_bf16 v[%d:%d], v[%d:%d], v[%d:%d], 0" %
                       (d + 4 * r, d + 4 * r + 3, k + 4 * r, k + 4 * r + 3, q, q + 3))
        self.calc_off()
        if nxt == 'k': self.issue_k(j)
        else: self.issue_v(j)
        self.e("  s_nop 1")
        if self.kmode == 2:
            for r in range(4):
                self.reduce_dpp(self.V_D + 4 * r, s + r)
            self.e("  s_nop 0")
        self.e("  v_max3_f32 v%d, v%d, v%d, v%d" % (tm, s, s + 1, tm))
        self.e("  v_max3_f32 v%d, v%d, v%d, v%d" % (tm, s + 2, s + 3, tm))
        self.e("  ds_write_b128 v%d, v[%d:%d] offset:%d" % (self.V_LA, s, s + 3, j * 128))

    def wd(self, r):
        if self.wpat is None or self.depth != self.fine: return 0
        return self.wpat[r]

    def trace_pt(self, vreg):
        if not self.trace: return
        self.e("  s_memrealtime s[74:75]")
        self.e("  s_waitcnt lgkmcnt(0)")
        self.e("  s_mov_b32 m0, s72")
        self.e("  v_writelane_b32 v%d, s74, m0" % vreg)
        self.e("  s_add_u32 s72, s72, 1")

    def reduce_dpp(self, d, dst):
        self.e("  v_mul_f32_dpp v%d, v%d, v%d quad_perm:[0,0,0,0] row_mask:0xf bank_mask:0xf" % (dst, d, self.V_C))
        for s in range(1, 4):
            self.e("  v_fmac_f32_dpp v%d, v%d, v%d quad_perm:[%d,%d,%d,%d] row_mask:0xf bank_mask:0xf" %
                   (dst, d + s, self.V_C, s, s, s, s))

    def vtile(self, j, nxt, wait, last):
        s = self.V_SA if j % 2 == 0 else self.V_SB
        sn = self.V_SB if j % 2 == 0 else self.V_SA
        p, b, o, mk, l, nmc = self.V_P, self.V_B, self.V_O, self.V_MASK, self.V_L, self.V_NMC
        v = self.slot(j)
        if not last:
            self.e("  ds_read_b128 v[%d:%d], v%d offset:%d" % (sn, sn + 3, self.V_LA, (j + 1) * 128))
            self.e("  s_waitcnt lgkmcnt(1)")
        else:
            self.e("  s_waitcnt lgkmcnt(0)")
        for r in range(4):
            if self.kmode == 1:
                self.e("  v_fma_f32 v%d, v%d, s34, v%d" % (p + r, s + r, nmc))
            else:
                self.e("  v_add_f32 v%d, v%d, v%d" % (p + r, s + r, nmc))
        for r in range(4):
            self.e("  v_exp_f32 v%d, v%d" % (p + r, p + r))
        self.e("  s_nop 0")
        for r in range(4):
            self.e("  v_add_f32 v%d, v%d, v%d" % (l, l, p + r))
        for r in range(4):
            self.e("  v_cvt_pk_bf16_f32 v%d, v%d, v%d" % (p + r, p + r, p + r))
        for r in range(4):
            for rr in range(4):
                self.e("  v_and_b32 v%d, v%d, v%d" % (b + 4 * r + rr, p + r, mk + rr))
        if self.fine:
            if nxt: self.calc_off()
            for r in range(4):
                w = (4 * self.R - 1) if nxt else (wait + 3 - r)
                self.e("  s_waitcnt vmcnt(%d)" % min(self.depth - 1 + self.wd(r), w))
                self.e("  v_mfma_f32_16x16x32_bf16 v[%d:%d], v[%d:%d], v[%d:%d], v[%d:%d]" %
                       (o, o + 3, v + 4 * r, v + 4 * r + 3, b + 4 * r, b + 4 * r + 3, o, o + 3))
                if nxt: self.issue_v1(j, r)
            self.trace_pt(13)
            return
        self.e("  s_waitcnt vmcnt(%d)" % min(self.wv, wait))
        for r in range(4):
            self.e("  v_mfma_f32_16x16x32_bf16 v[%d:%d], v[%d:%d], v[%d:%d], v[%d:%d]" %
                   (o, o + 3, v + 4 * r, v + 4 * r + 3, b + 4 * r, b + 4 * r + 3, o, o + 3))
        if nxt:
            self.calc_off()
            self.issue_v(j)

    def build(self):
        S, W, R, NT = self.S, self.W, self.R, self.NT
        e = self.e
        lane = self.V_LANE
        e(HEADER.rstrip("\n"))
        e("; @launch grid=(%d,1,1) block=(%d,1,1) lds=%d" % (self.NWG, 64 * W, self.lds))
        e('.amdgcn_target "amdgcn-amd-amdhsa--gfx950"')
        e(".text")
        e(".globl %s_kernel" % NAME)
        e(".p2align 8")
        e(".type %s_kernel,@function" % NAME)
        e("%s_kernel:" % NAME)
        e("  s_cmp_ge_u32 s2, %d" % self.NWG)
        e("  s_cbranch_scc1 L_exit")
        if self.stamp: e("  s_memrealtime s[44:45]")
        e("  s_load_dwordx16 s[4:19], s[0:1], 0")
        e("  s_load_dwordx2 s[20:21], s[0:1], 64")
        e("  v_and_b32 v%d, 63, v0" % lane)
        e("  v_lshrrev_b32 v3, 6, v0")
        e("  s_nop 0")
        e("  v_readfirstlane_b32 s3, v3")
        lg = int(math.log2(S))
        if self.mapmode == 0:
            e("  s_and_b32 s22, s2, 127"); e("  s_lshr_b32 s23, s2, 7")
        elif self.mapmode == 1:
            e("  s_lshr_b32 s22, s2, %d" % lg); e("  s_and_b32 s23, s2, %d" % (S - 1))
        elif self.mapmode == 2:
            e("  s_and_b32 s22, s2, 7"); e("  s_lshl_b32 s22, s22, 4")
            e("  s_lshr_b32 s23, s2, %d" % (3 + lg)); e("  s_add_u32 s22, s22, s23")
            e("  s_lshr_b32 s23, s2, 3"); e("  s_and_b32 s23, s23, %d" % (S - 1))
        elif self.mapmode == 3:
            e("  s_lshr_b32 s23, s2, %d" % (3 + lg))
            e("  s_add_u32 s22, s2, s23"); e("  s_and_b32 s22, s22, 7")
            e("  s_lshl_b32 s23, s23, 3"); e("  s_add_u32 s22, s22, s23")
            e("  s_lshr_b32 s23, s2, 3"); e("  s_and_b32 s23, s23, %d" % (S - 1))
        e("  v_lshrrev_b32 v60, 4, v%d            ; g" % lane)
        e("  v_and_b32 v61, 15, v%d               ; i / n" % lane)
        e("  v_lshlrev_b32 v%d, 4, v%d" % (self.V_VOFF, lane))
        if self.kmode == 1:
            e("  v_and_b32 v62, 3, v61")
            e("  v_mul_u32_u24 v62, %d, v62          ; (i&3)*gs" % self.amap["gs"])
            e("  v_lshrrev_b32 v63, 2, v61")
            e("  v_lshlrev_b32 v63, 8, v63           ; (i>>2)*256")
            e("  v_add_u32 v62, v62, v63")
            e("  v_lshlrev_b32 v63, 4, v60           ; g*16")
        else:
            e("  v_lshrrev_b32 v62, 2, v61")
            e("  v_lshlrev_b32 v62, 8, v62           ; kk*256")
            e("  v_and_b32 v63, 3, v61               ; s")
            e("  v_lshlrev_b32 v63, 4, v63           ; s*16")
            e("  v_lshl_add_u32 v63, v60, 6, v63     ; g*64 + s*16")
        e("  v_add_u32 v%d, v62, v63" % self.V_KOFF)
        e("  v_lshrrev_b32 v62, 3, v61")
        e("  v_lshlrev_b32 v62, 8, v62")
        e("  v_add_u32 v3, v62, v63              ; Q voffset")
        for r in range(4):
            e("  v_add_u32 v%d, %d, v%d" % (self.V_VR + r, r * self.amap["gs"], self.V_VOFF))
        if self.kmode == 2:
            for r in range(4):
                e("  v_add_u32 v%d, %d, v%d" % (16 + r, r * self.amap["gs"], self.V_KOFF))
        e("  v_lshrrev_b32 v62, 3, v61           ; h")
        e("  v_lshl_add_u32 v62, v60, 1, v62     ; g*2+h")
        e("  v_lshlrev_b32 v62, 4, v62")
        e("  s_mul_i32 s36, s3, %d" % (NT * 128))
        e("  v_add_u32 v%d, s36, v62" % self.V_LA)
        e("  v_and_b32 v62, 1, v61")
        e("  v_cmp_eq_u32 vcc, 1, v62")
        e("  v_mov_b32 v62, 0xffff")
        e("  v_mov_b32 v63, 0xffff0000")
        e("  v_cndmask_b32 v62, v62, v63, vcc")
        e("  v_bfe_u32 v63, v61, 1, 2             ; (n&7)>>1")
        for rr in range(4):
            e("  v_cmp_eq_u32 vcc, %d, v63" % rr)
            e("  s_nop 1")
            e("  v_cndmask_b32 v%d, 0, v62, vcc" % (self.V_MASK + rr))
        e("  s_mov_b32 s34, %s" % hexf(C_SCALE))
        e("  s_mov_b32 s35, %s" % hexf(-C_SCALE))
        e("  v_mov_b32 v%d, 0xff800000" % self.V_TM)
        e("  v_mov_b32 v%d, 0xff800000" % self.V_ST)
        for r in range(4):
            e("  v_mov_b32 v%d, 0" % (self.V_VT + r))
        e("  s_waitcnt lgkmcnt(0)")
        e("  s_lshl_b32 s36, s22, 9")
        e("  s_add_u32 s4, s4, s36")
        e("  s_addc_u32 s5, s5, 0")
        for t in range(4 if self.kmode == 1 else 1):
            e("  global_load_dwordx4 v[%d:%d], v3, s[4:5] offset:%d" % (self.V_Q + 4 * t, self.V_Q + 4 * t + 3, t * 64))
        if self.grp >= 0:
            G = self.grp
            e("  s_lshr_b32 s36, s2, %d" % (G + 1))
            e("  s_lshl_b32 s36, s36, %d" % (21 + G))
            e("  s_and_b32 s37, s2, %d" % ((1 << (G + 1)) - 1))
            e("  s_mul_i32 s37, s37, %d" % self.amap["ss"])
            e("  s_add_u32 s36, s36, s37")
        else:
            e("  s_lshl_b32 s36, s22, 21")
            e("  s_mul_i32 s37, s23, %d" % self.amap.get("ss", self.WGBYTES))
            e("  s_add_u32 s36, s36, s37")
        e("  s_mul_i32 s37, s3, %d" % self.amap["ws"])
        e("  s_add_u32 s36, s36, s37")
        e("  s_add_u32 s24, s6, s36")
        e("  s_addc_u32 s25, s7, 0")
        e("  s_and_b32 s25, s25, 0xffff")
        if self.grp >= 0:
            e("  s_mov_b32 s26, %d" % (1 << (21 + self.grp)))
            e("  s_and_b32 s27, s2, %d" % ((1 << (self.grp + 1)) - 1))
            e("  s_mul_i32 s27, s27, %d" % self.amap["ss"])
            e("  s_sub_u32 s26, s26, s27")
            e("  s_sub_u32 s26, s26, s37")
        elif "ss" in self.amap:
            e("  s_mov_b32 s26, 0x200000")
            e("  s_mul_i32 s27, s23, %d" % self.amap["ss"])
            e("  s_sub_u32 s26, s26, s27")
            e("  s_sub_u32 s26, s26, s37")
        else:
            e("  s_sub_u32 s26, %d, s37" % self.WGBYTES)
        e("  s_mov_b32 s27, 0x20000")
        e("  s_add_u32 s28, s8, s36")
        e("  s_addc_u32 s29, s9, 0")
        e("  s_and_b32 s29, s29, 0xffff")
        e("  s_mov_b32 s30, s26")
        e("  s_mov_b32 s31, 0x20000")
        if self.treesplit or self.treewave:
            e("  s_xor_b32 s38, s23, %d" % self.treesplit)
            e("  s_xor_b32 s39, s3, %d" % self.treewave)
            e("  s_or_b32 s38, s38, s39")
        else:
            e("  s_or_b32 s38, s23, s3")
        e("  s_cmp_lg_u32 s38, 0")
        e("  s_cbranch_scc1 L_notree_issue")
        e("  s_lshl_b32 s36, s22, 8              ; pair*256")
        e("  s_add_u32 s10, s10, s36")
        e("  s_addc_u32 s11, s11, 0")
        e("  s_add_u32 s12, s12, s36")
        e("  s_addc_u32 s13, s13, 0")
        if self.kmode == 1:
            e("  v_lshlrev_b32 v62, 4, v60           ; g*16")
            for t in range(4):
                e("  global_load_dwordx4 v[%d:%d], v62, s[10:11] offset:%d" % (self.V_B + 4 * t, self.V_B + 4 * t + 3, t * 64))
        else:
            e("  v_and_b32 v63, 3, v61")
            e("  v_lshlrev_b32 v63, 4, v63")
            e("  v_lshl_add_u32 v62, v60, 6, v63     ; g*64 + s*16")
            e("  global_load_dwordx4 v[%d:%d], v62, s[10:11]" % (self.V_B + 4, self.V_B + 7))
        e("  v_and_b32 v63, 7, v61")
        e("  v_lshlrev_b32 v63, 1, v63")
        e("  v_lshl_add_u32 v63, v60, 6, v63")
        for r in range(4):
            e("  global_load_ushort v%d, v63, s[12:13] offset:%d" % (self.V_VT + r, r * 16))
        e("  s_lshr_b32 s36, s22, 4")
        e("  s_lshl_b32 s37, s36, 1")
        e("  s_and_b32 s37, s37, 0xfffffffc")
        e("  s_load_dword s39, s[14:15], s37")
        e("L_notree_issue:")
        if self.trot:
            e("  s_lshr_b32 s73, s2, %d" % self.trot[0])
            e("  s_and_b32 s73, s73, %d" % self.trot[1])
            e("  s_mul_i32 s73, s73, %d" % self.trot[2])
            e("  s_mov_b32 s70, s73")
        else:
            e("  s_mov_b32 s70, 0")
        for j in range(R):
            self.calc_off()
            self.issue_k(j)
        if self.touch:
            e("  v_mov_b32 v12, 0")
            if self.touch & 1:
                e("  s_mov_b64 exec, 1")
                e("  buffer_load_dword v13, v12, s[28:31], 0 offen")
                e("  s_mov_b64 exec, -1")
            if self.touch & 2:
                e("  s_cmp_lg_u32 s3, 1")
                e("  s_cbranch_scc1 L_notouch")
                e("  s_lshl_b32 s42, s2, 7")
                e("  s_add_u32 s42, s42, 0x100000")
                e("  s_add_u32 s72, s20, s42")
                e("  s_addc_u32 s73, s21, 0")
                e("  s_lshl_b32 s42, s22, 9")
                e("  s_add_u32 s74, s16, s42")
                e("  s_addc_u32 s75, s17, 0")
                e("  s_lshr_b32 s42, s22, 1")
                e("  s_lshl_b32 s42, s42, 2")
                e("  v_mov_b32 v14, s42")
                e("  s_mov_b64 exec, 1")
                e("  global_load_dword v13, v12, s[72:73]")
                e("  global_load_dword v13, v12, s[74:75]")
                e("  global_atomic_add v14, v12, s[18:19]")
                e("  s_mov_b64 exec, -1")
                e("L_notouch:")
        e("  s_cmp_lg_u32 s38, 0")
        e("  s_cbranch_scc1 L_notree")
        e("  s_waitcnt lgkmcnt(0)")
        e("  s_and_b32 s36, s36, 1")
        e("  s_lshl_b32 s36, s36, 4")
        e("  s_lshr_b32 s39, s39, s36")
        e("  s_lshl_b32 s39, s39, 16")
        e("  s_waitcnt vmcnt(%d)" % (4 * R))
        if self.kmode == 1:
            self.qk(self.V_B, self.V_SA)
            e("  s_nop 7")
            e("  v_sub_f32 v62, 1.0, s39")
            e("  v_mul_f32 v62, %s, v62" % hexf(-1e9 * math.sqrt(128.0)))
            e("  v_add_f32 v%d, v%d, v62" % (self.V_ST, self.V_SA))
        else:
            e("  v_mov_b32 v%d, s34" % self.V_C)
            e("  v_mfma_f32_16x16x32_bf16 v[%d:%d], v[%d:%d], v[%d:%d], 0" % (self.V_D, self.V_D + 3, self.V_B + 4, self.V_B + 7, self.V_Q, self.V_Q + 3))
            e("  s_nop 7")
            self.reduce_dpp(self.V_D, self.V_SA)
            e("  v_sub_f32 v62, 1.0, s39")
            e("  v_mul_f32 v62, %s, v62" % hexf(-1e9 * math.log2(math.e)))
            e("  v_add_f32 v%d, v%d, v62" % (self.V_ST, self.V_SA))
        for r in range(4):
            e("  v_lshlrev_b32 v%d, 16, v%d" % (self.V_VT + r, self.V_VT + r))
        e("L_notree:")
        if self.kmode == 2:
            e("  v_mov_b32 v%d, s34" % self.V_C)
        if self.stamp:
            e("  s_waitcnt vmcnt(%d)" % (4 * (R - 1)))
            e("  s_memrealtime s[46:47]")
            e("  s_waitcnt lgkmcnt(0)")
        if self.trace: e("  s_mov_b32 s72, 0")
        if self.kfine: self.depth = self.kfine
        n1 = NT // R - 1
        kdep = self.depth
        kb = self.kboost[0] if self.kboost else 0
        for (cnt, dep, lab) in ((kb, self.kboost[1] if self.kboost else 0, "L_p1a"), (n1 - kb, kdep, "L_p1")):
            if cnt <= 0: continue
            self.depth = dep
            e("  s_mov_b32 s33, %d" % cnt)
            if self.align: e(".p2align %d" % self.align)
            e("%s:" % lab)
            for j in range(R): self.ktile(j, 'k')
            e("  v_add_u32 v%d, %d, v%d" % (self.V_LA, R * 128, self.V_LA))
            e("  s_sub_u32 s33, s33, 1")
            e("  s_cmp_lg_u32 s33, 0")
            e("  s_cbranch_scc1 %s" % lab)
        self.depth = kdep
        e("  s_mov_b32 s70, %s" % ("s73" if self.trot else "0"))
        for j in range(R): self.ktile(j, 'v')
        if self.trace: e("  s_mov_b32 s72, 0")
        if self.stamp:
            e("  s_memrealtime s[58:59]")
        tm, t1, m = self.V_TM, self.V_T1, self.V_M
        e("  v_subrev_u32 v%d, %d, v%d" % (self.V_LA, (NT - R) * 128, self.V_LA))
        e("  v_mov_b32 v%d, v%d" % (t1, tm))
        e("  s_nop 1")
        e("  v_permlane16_swap_b32 v%d, v%d" % (tm, t1))
        e("  s_nop 1")
        e("  v_max_f32 v%d, v%d, v%d" % (tm, tm, t1))
        e("  v_mov_b32 v%d, v%d" % (t1, tm))
        e("  s_nop 1")
        e("  v_permlane32_swap_b32 v%d, v%d" % (tm, t1))
        e("  s_nop 1")
        e("  v_max_f32 v%d, v%d, v%d" % (tm, tm, t1))
        e("  v_max_f32 v%d, v%d, v%d" % (m, tm, self.V_ST))
        if self.kmode == 1:
            e("  v_mul_f32 v%d, s35, v%d" % (self.V_NMC, m))
            e("  v_fma_f32 v%d, v%d, s34, v%d" % (t1, self.V_ST, self.V_NMC))
        else:
            e("  v_sub_f32 v%d, 0, v%d" % (self.V_NMC, m))
            e("  v_add_f32 v%d, v%d, v%d" % (t1, self.V_ST, self.V_NMC))
        e("  v_exp_f32 v%d, v%d" % (t1, t1))
        e("  v_cmp_gt_u32 vcc, 16, v%d" % lane)
        e("  s_nop 1")
        e("  v_cndmask_b32 v%d, 0, v%d, vcc" % (self.V_L, t1))
        for r in range(4):
            e("  v_mul_f32 v%d, v%d, v%d" % (self.V_O + r, t1, self.V_VT + r))
        e("  s_waitcnt lgkmcnt(0)")
        e("  ds_read_b128 v[%d:%d], v%d" % (self.V_SA, self.V_SA + 3, self.V_LA))
        stages = list(self.bstages) if self.bstages else ([(self.boost[0], self.boost[1])] if self.boost else [])
        nboost = sum(c for c, d in stages) - (1 if stages else 0)
        plan = [(n1 - nboost, self.fine)]
        for i, (c, d) in enumerate(stages):
            plan.append((c - (1 if i == len(stages) - 1 else 0), d))
        for i, (cnt, dep) in enumerate(plan):
            if cnt <= 0: continue
            lab = "L_p2_%d" % i
            self.depth = dep
            e("  s_mov_b32 s33, %d" % cnt)
            if self.align: e(".p2align %d" % self.align)
            e("%s:" % lab)
            for j in range(R): self.vtile(j, True, 4 * (R - 1), False)
            e("  v_add_u32 v%d, %d, v%d" % (self.V_LA, R * 128, self.V_LA))
            e("  s_sub_u32 s33, s33, 1")
            e("  s_cmp_lg_u32 s33, 0")
            e("  s_cbranch_scc1 %s" % lab)
        self.depth = stages[-1][1] if stages else self.fine
        for j in range(R): self.vtile(j, False, 4 * (R - 1 - j), j == R - 1)
        if self.stamp:
            e("  s_memrealtime s[48:49]")
            e("  s_waitcnt lgkmcnt(0)")
            self.store_stamps(False)
        if self.trace:
            e("  s_mul_i32 s52, s2, %d" % self.W)
            e("  s_add_u32 s52, s52, s3")
            e("  s_lshl_b32 s52, s52, 9")
            e("  s_add_u32 s52, s52, 0x20100000")
            e("  s_add_u32 s54, s20, s52")
            e("  s_addc_u32 s55, s21, 0")
            e("  v_lshlrev_b32 v14, 2, v%d" % lane)
            e("  global_store_dword v14, v12, s[54:55]")
            e("  global_store_dword v14, v13, s[54:55] offset:256")
        if self.fast and self.early:
            e("  s_lshr_b32 s36, s22, 1")
            e("  s_lshl_b32 s36, s36, 2")
            e("  v_mov_b32 v12, s36")
            e("  v_mov_b32 v13, 0")
            e("  s_cmp_lg_u32 s3, 0")
            e("  s_cbranch_scc1 L_noearly")
            e("  s_mov_b64 exec, 1")
            e("  global_atomic_add v14, v12, v13, s[18:19] sc0")
            e("  s_mov_b64 exec, -1")
            e("L_noearly:")
        l = self.V_L
        e("  v_mov_b32 v%d, v%d" % (t1, l))
        e("  s_nop 1")
        e("  v_permlane16_swap_b32 v%d, v%d" % (l, t1))
        e("  s_nop 1")
        e("  v_add_f32 v%d, v%d, v%d" % (l, l, t1))
        e("  v_mov_b32 v%d, v%d" % (t1, l))
        e("  s_nop 1")
        e("  v_permlane32_swap_b32 v%d, v%d" % (l, t1))
        e("  s_nop 1")
        e("  v_add_f32 v%d, v%d, v%d" % (l, l, t1))
        e("  v_lshrrev_b32 v60, 4, v%d" % lane)
        e("  v_and_b32 v61, 15, v%d" % lane)
        e("  v_lshrrev_b32 v62, 3, v61")
        e("  v_lshlrev_b32 v62, 9, v62")
        e("  v_lshl_add_u32 v62, v60, 7, v62")
        e("  v_and_b32 v63, 7, v61")
        e("  v_lshl_add_u32 v62, v63, 2, v62")
        e("  s_lshl_b32 s36, s3, 10")
        e("  s_add_u32 s36, s36, %d" % self.EP)
        e("  v_add_u32 v62, s36, v62")
        for r in range(4):
            e("  ds_write_b32 v62, v%d offset:%d" % (self.V_O + r, r * 32))
        e("  v_lshrrev_b32 v63, 3, v61")
        e("  v_lshlrev_b32 v63, 3, v63")
        e("  s_lshl_b32 s36, s3, 4")
        e("  s_add_u32 s36, s36, %d" % (self.EP + W * 1024))
        e("  v_add_u32 v63, s36, v63")
        e("  v_mov_b32 v60, v%d" % m)
        e("  v_mov_b32 v61, v%d" % l)
        e("  ds_write_b64 v63, v[60:61]")
        if self.fast and self.early:
            e("  s_waitcnt lgkmcnt(0)")
        else:
            e("  s_waitcnt vmcnt(0) lgkmcnt(0)")
        e("  s_barrier")
        e("  s_cmp_lg_u32 s3, 0")
        e("  s_cbranch_scc1 L_end")
        if self.stamp: e("  s_memrealtime s[60:61]")
        e("  s_lshr_b32 s36, s22, 1")
        e("  s_lshl_b32 s36, s36, 2")
        e("  s_and_b32 s37, s22, 1")
        e("  s_lshl_b32 s37, s37, 4")
        e("  v_mov_b32 v12, s36")
        if self.fast and not self.early:
            e("  v_mov_b32 v13, 0")
            e("  s_mov_b64 exec, 1")
            e("  global_atomic_add v14, v12, v13, s[18:19] sc0")
            e("  s_mov_b64 exec, -1")
        e("  v_lshlrev_b32 v1, 4, v%d             ; lane*16" % lane)
        e("  v_lshrrev_b32 v2, 5, v%d" % lane)
        e("  v_lshlrev_b32 v2, 3, v2              ; h*8")
        e("  v_add_u32 v2, %d, v2" % (self.EP + W * 1024))
        e("  v_add_u32 v3, %d, v1" % self.EP)
        OB, MB = 76, 76 + 4 * W
        for w in range(W):
            e("  ds_read_b64 v[%d:%d], v2 offset:%d" % (MB + 2 * w, MB + 2 * w + 1, w * 16))
        for w in range(W):
            e("  ds_read_b128 v[%d:%d], v3 offset:%d" % (OB + 4 * w, OB + 4 * w + 3, w * 1024))
        e("  s_mul_i32 s42, s22, %d" % S)
        e("  s_add_u32 s43, s42, s23")
        e("  s_lshl_b32 s43, s43, 11")
        e("  s_add_u32 s40, s20, s43")
        e("  s_addc_u32 s41, s21, 0")
        if self.fast:
            assert S == 2
            e("  s_xor_b32 s43, s43, 2048")
            e("  s_add_u32 s72, s20, s43")
            e("  s_addc_u32 s73, s21, 0")
        e("  s_waitcnt lgkmcnt(0)")
        self.merge(W, OB, MB, 4, 8)
        e("  v_mov_b32 v10, 0")
        e("  v_mov_b32 v11, 0")
        e("  global_store_dwordx4 v1, v[4:7], s[40:41] sc1")
        e("  global_store_dwordx4 v1, v[8:11], s[40:41] offset:1024 sc1")
        if self.fast:
            e("  s_waitcnt vmcnt(2)")
            e("  v_readfirstlane_b32 s43, v14")
            e("  s_nop 3")
            e("  s_lshr_b32 s43, s43, s37")
            e("  s_and_b32 s43, s43, 0xff")
            e("  s_cmp_lg_u32 s43, 0")
            e("  s_cbranch_scc1 L_combine")
        e("  s_waitcnt vmcnt(0)")
        if self.stamp: e("  s_memrealtime s[62:63]")
        e("  s_lshl_b32 s42, 1, s37")
        e("  v_mov_b32 v13, s42")
        e("  s_mov_b64 exec, 1")
        e("  global_atomic_add v14, v12, v13, s[18:19] sc0")
        e("  s_waitcnt vmcnt(0)")
        if self.stamp: e("  s_memrealtime s[64:65]")
        e("  v_readfirstlane_b32 s43, v14")
        e("  s_mov_b64 exec, -1")
        e("  s_nop 3")
        e("  s_lshr_b32 s43, s43, s37")
        e("  s_and_b32 s43, s43, 0xff")
        e("  s_cmp_lg_u32 s43, %d" % (S - 1))
        e("  s_cbranch_scc1 L_end")
        if self.fast:
            e("L_combine:")
            e("  global_load_dwordx4 v[80:83], v1, s[72:73] sc1")
            e("  global_load_dwordx2 v[86:87], v1, s[72:73] offset:1024 sc1")
            for r in range(4): e("  v_mov_b32 v%d, v%d" % (76 + r, 4 + r))
            e("  v_mov_b32 v84, v8")
            e("  v_mov_b32 v85, v9")
            e("  s_lshl_b32 s36, s22, 9")
            e("  s_add_u32 s16, s16, s36")
            e("  s_addc_u32 s17, s17, 0")
            e("  v_lshrrev_b32 v2, 1, v1             ; lane*8")
            e("  s_waitcnt vmcnt(0)")
            if self.stamp: e("  s_memrealtime s[66:67]")
            e("  v_max_f32 v8, v84, v86")
            e("  v_sub_f32 v84, v84, v8")
            e("  v_sub_f32 v86, v86, v8")
            if self.kmode == 1:
                e("  v_mul_f32 v84, s34, v84"); e("  v_mul_f32 v86, s34, v86")
            e("  v_exp_f32 v84, v84")
            e("  v_exp_f32 v86, v86")
            e("  s_nop 0")
            e("  v_mul_f32 v85, v84, v85")
            e("  v_mul_f32 v87, v86, v87")
            e("  v_add_f32 v9, v85, v87")
            e("  v_rcp_f32 v9, v9")
            for r in range(4):
                e("  v_mul_f32 v%d, v84, v%d" % (76 + r, 76 + r))
                e("  v_mul_f32 v%d, v86, v%d" % (80 + r, 80 + r))
            for r in range(4):
                e("  v_add_f32 v%d, v%d, v%d" % (4 + r, 76 + r, 80 + r))
            for r in range(4): e("  v_mul_f32 v%d, v%d, v9" % (4 + r, 4 + r))
            e("  v_cvt_pk_bf16_f32 v4, v4, v5")
            e("  v_cvt_pk_bf16_f32 v5, v6, v7")
            e("  global_store_dwordx2 v2, v[4:5], s[16:17] %s" % self.outpol)
        else:
            self.final_combine("sc1")
        e("L_end:")
        if self.stamp:
            e("  s_cmp_lg_u32 s3, 0")
            e("  s_cbranch_scc1 L_exit")
            e("  s_waitcnt vmcnt(0)")
            e("  s_memrealtime s[50:51]")
            e("  s_waitcnt lgkmcnt(0)")
            self.store_stamps(True)
        e("L_exit:")
        e("  s_endpgm")
        e('.section .rodata,"a"')
        e(".p2align 6")
        e(".amdhsa_kernel %s_kernel" % NAME)
        nv = self.nvgpr()
        e("  .amdhsa_next_free_vgpr %d" % nv)
        e("  .amdhsa_next_free_sgpr 80")
        e("  .amdhsa_accum_offset %d" % ((nv + 3) // 4 * 4))
        e("  .amdhsa_group_segment_fixed_size 0")
        e("  .amdhsa_kernarg_size 72")
        e("  .amdhsa_user_sgpr_count 2")
        e("  .amdhsa_user_sgpr_kernarg_segment_ptr 1")
        e("  .amdhsa_system_sgpr_workgroup_id_x 1")
        e(".end_amdhsa_kernel")
        return "\n".join(self.lines) + "\n"

    def store_stamps(self, final):
        e = self.e
        e("  s_mul_i32 s52, s2, %d" % self.W)
        e("  s_add_u32 s52, s52, s3")
        e("  s_lshl_b32 s52, s52, 6")
        e("  s_add_u32 s52, s52, 0x20000000")
        e("  s_add_u32 s54, s20, s52")
        e("  s_addc_u32 s55, s21, 0")
        if not final:
            e("  v_mov_b32 v60, s44"); e("  v_mov_b32 v61, s46"); e("  v_mov_b32 v62, s48"); e("  v_mov_b32 v63, s2")
            e("  v_mov_b32 v3, 0")
            e("  global_store_dwordx4 v3, v[60:63], s[54:55]")
            e("  v_mov_b32 v64, s58")
            e("  global_store_dword v3, v64, s[54:55] offset:48")
            for r in range(60, 68): e("  s_mov_b32 s%d, 0" % r)
        else:
            e("  v_mov_b32 v60, s50")
            e("  s_getreg_b32 s56, hwreg(HW_REG_XCC_ID)")
            e("  s_getreg_b32 s57, hwreg(HW_REG_HW_ID)")
            e("  v_mov_b32 v61, s56"); e("  v_mov_b32 v62, s57"); e("  v_mov_b32 v63, 0"); e("  v_mov_b32 v3, 0")
            e("  global_store_dwordx4 v3, v[60:63], s[54:55] offset:16")
            e("  v_mov_b32 v64, s60"); e("  v_mov_b32 v65, s62"); e("  v_mov_b32 v66, s64"); e("  v_mov_b32 v67, s66")
            e("  global_store_dwordx4 v3, v[64:67], s[54:55] offset:32")

    def merge(self, n, OB, MB, OD, MD):
        e = self.e
        e("  v_mov_b32 v%d, v%d" % (MD, MB))
        for w in range(1, n): e("  v_max_f32 v%d, v%d, v%d" % (MD, MD, MB + 2 * w))
        for w in range(n): e("  v_sub_f32 v%d, v%d, v%d" % (MB + 2 * w, MB + 2 * w, MD))
        if self.kmode == 1:
            for w in range(n): e("  v_mul_f32 v%d, s34, v%d" % (MB + 2 * w, MB + 2 * w))
        for w in range(n): e("  v_exp_f32 v%d, v%d" % (MB + 2 * w, MB + 2 * w))
        e("  s_nop 0")
        e("  v_mul_f32 v%d, v%d, v%d" % (MD + 1, MB, MB + 1))
        for w in range(1, n): e("  v_fmac_f32 v%d, v%d, v%d" % (MD + 1, MB + 2 * w, MB + 2 * w + 1))
        for r in range(4): e("  v_mul_f32 v%d, v%d, v%d" % (OD + r, MB, OB + r))
        for w in range(1, n):
            for r in range(4): e("  v_fmac_f32 v%d, v%d, v%d" % (OD + r, MB + 2 * w, OB + 4 * w + r))

    def final_combine(self, pol):
        e = self.e; S = self.S
        e("  s_mul_i32 s36, s22, %d" % (S * 2048))
        e("  s_add_u32 s40, s20, s36")
        e("  s_addc_u32 s41, s21, 0")
        OB = 76; MB = 76 + 4 * S
        for s in range(S):
            off = s * 2048
            if off + 1024 + 16 <= 4095:
                e("  global_load_dwordx4 v[%d:%d], v1, s[40:41] offset:%d %s" % (OB + 4 * s, OB + 4 * s + 3, off, pol))
                e("  global_load_dwordx2 v[%d:%d], v1, s[40:41] offset:%d %s" % (MB + 2 * s, MB + 2 * s + 1, off + 1024, pol))
            else:
                e("  v_add_u32 v3, %d, v1" % off)
                e("  global_load_dwordx4 v[%d:%d], v3, s[40:41] %s" % (OB + 4 * s, OB + 4 * s + 3, pol))
                e("  global_load_dwordx2 v[%d:%d], v3, s[40:41] offset:1024 %s" % (MB + 2 * s, MB + 2 * s + 1, pol))
        e("  s_waitcnt vmcnt(0)")
        if self.stamp: e("  s_memrealtime s[66:67]")
        self.merge(S, OB, MB, 4, 8)
        e("  v_rcp_f32 v9, v9")
        e("  s_nop 0")
        for r in range(4): e("  v_mul_f32 v%d, v%d, v9" % (4 + r, 4 + r))
        e("  v_cvt_pk_bf16_f32 v4, v4, v5")
        e("  v_cvt_pk_bf16_f32 v5, v6, v7")
        e("  s_lshl_b32 s36, s22, 9")
        e("  s_add_u32 s16, s16, s36")
        e("  s_addc_u32 s17, s17, 0")
        e("  v_lshrrev_b32 v2, 1, v1             ; lane*8")
        e("  global_store_dwordx2 v2, v[4:5], s[16:17]")

if __name__ == "__main__":
    ap = argparse.ArgumentParser()
    ap.add_argument("-o", default="cdna_kernels/%s.s" % NAME)
    ap.add_argument("--S", type=int, default=2)
    ap.add_argument("--W", type=int, default=4)
    ap.add_argument("--R", type=int, default=8)
    ap.add_argument("--pol", default="nt")
    ap.add_argument("--map", type=int, default=0)
    ap.add_argument("--stamp", action="store_true")
    ap.add_argument("--ldsmin", type=int, default=98304)
    ap.add_argument("--amap", default="")
    ap.add_argument("--kmode", type=int, default=1)
    ap.add_argument("--kpol", default=None)
    ap.add_argument("--wv", type=int, default=63)
    ap.add_argument("--fine", type=int, default=0)
    ap.add_argument("--boost", default="")
    ap.add_argument("--kfine", type=int, default=0)
    ap.add_argument("--trace", action="store_true")
    ap.add_argument("--fast", action="store_true")
    ap.add_argument("--early", action="store_true")
    ap.add_argument("--ss", type=int, default=-1)
    ap.add_argument("--grp", type=int, default=-1)
    ap.add_argument("--wpat", default="")
    ap.add_argument("--kboost", default="")
    ap.add_argument("--bstages", default="")
    ap.add_argument("--touch", type=int, default=0)
    ap.add_argument("--trot", default="")
    ap.add_argument("--align", type=int, default=0)
    ap.add_argument("--treesplit", type=int, default=0)
    ap.add_argument("--treewave", type=int, default=0)
    ap.add_argument("--outpol", default="")
    a = ap.parse_args()
    am = parse_amap(a.amap)
    if am is not None and a.ss >= 0: am["ss"] = 1 << a.ss
    g = Gen2(S=a.S, W=a.W, R=a.R, pol=a.pol, mapmode=a.map, stamp=a.stamp, ldsmin=a.ldsmin, amap=am, kmode=a.kmode, kpol=a.kpol, wv=a.wv, fine=a.fine, boost=tuple(int(x) for x in a.boost.split(',')) if a.boost else None, kfine=a.kfine, trace=a.trace, fast=a.fast, early=a.early, outpol=a.outpol, grp=a.grp, treesplit=a.treesplit, treewave=a.treewave, align=a.align, trot=tuple(int(x) for x in a.trot.split(',')) if a.trot else None, touch=a.touch, bstages=[tuple(int(y) for y in x.split(':')) for x in a.bstages.split(',')] if a.bstages else None, kboost=tuple(int(x) for x in a.kboost.split(',')) if a.kboost else None, wpat=[int(x) for x in a.wpat.split(',')] if a.wpat else None)
    open(a.o, "w").write(g.build())
    print("wrote", a.o, "vgprs", g.nvgpr(), "lds", g.lds)
```
